```python
import torch

def _softmax(x, axis=-1):
    return torch.softmax(x, dim=axis)

def _gelu(x):
    return torch.nn.functional.gelu(x, approximate='tanh')

def _silu(x):
    return torch.nn.functional.silu(x)

def _sigmoid(x):
    return torch.sigmoid(x)

def _layernorm(x, axis=-1, eps=1e-05):
    m = x.mean(dim=axis, keepdim=True)
    v = x.var(dim=axis, keepdim=True, unbiased=False)
    return (x - m) / torch.sqrt(v + eps)

def _scatter_add(tgt, idx, src, axis=0):
    return tgt.clone().index_add_(axis, idx, src)

def _segment_sum(src, seg, n):
    out = torch.zeros((n,) + src.shape[1:], dtype=src.dtype)
    return out.index_add_(0, seg, src)

def _pad(x, pw):
    flat = tuple((v for pair in reversed(pw) for v in pair))
    return torch.nn.functional.pad(x, flat)
kernel_name = 'adaLN_cond__sliding_local_dilated__glu_gated_reglu__prompt'

def setup_inputs():

    _w = lambda a: (lambda t: t.to(torch.bfloat16) if t.is_floating_point() else t)(torch.as_tensor(a))

    def _A_setup():
        B, S, D = (1, 2048, 512)
        return {'x': _w((lambda *s: torch.randn(*s, dtype=torch.bfloat16) * 0.05)(B, S, D)), 'wqkv': _w((lambda *s: torch.randn(*s, dtype=torch.bfloat16) * 0.05)(D, 3 * D)), 'wo': _w((lambda *s: torch.randn(*s, dtype=torch.bfloat16) * 0.05)(D, D))}
    _A_in = _A_setup()

    def _B_setup():
        B, S, D, F = (1, 2048, 512, 1792)
        return {'x': _w((lambda *s: torch.randn(*s, dtype=torch.bfloat16) * 0.05)(B, S, D)), 'W_gate': _w((lambda *s: torch.randn(*s, dtype=torch.bfloat16) * 0.8)(D, F) * (2.0 / D) ** 0.5), 'W_up': _w((lambda *s: torch.randn(*s, dtype=torch.bfloat16) * 0.8)(D, F) * (2.0 / D) ** 0.5), 'W_down': _w((lambda *s: torch.randn(*s, dtype=torch.bfloat16) * 0.8)(F, D) * (1.0 / F) ** 0.5)}
    _B_in = _B_setup()
    return {'A_x': _A_in['x'], 'A_wqkv': _A_in['wqkv'], 'A_wo': _A_in['wo'], 'B_x': _B_in['x'], 'B_W_gate': _B_in['W_gate'], 'B_W_up': _B_in['W_up'], 'B_W_down': _B_in['W_down'], 'c': _w((lambda *s: torch.randn(*s, dtype=torch.bfloat16) * 0.1)(1, 512) * 8.0), 'w_mod': _w((lambda *s: torch.randn(*s, dtype=torch.bfloat16) * 0.1)(512, 6 * 512) * 512 ** (-0.5) * 8.0)}

def reference(A_x, A_wqkv, A_wo, B_x, B_W_gate, B_W_up, B_W_down, c, w_mod):

    def _A_ref(x, wqkv, wo):
        B, S, D = x.shape
        H = 32
        Dh = D // H
        W, dil = (8, 2)
        qkv = (lambda x, *d: x.permute(*d))((x @ wqkv).reshape(B, S, 3, H, Dh), 2, 0, 3, 1, 4)
        q, k, v = (qkv[0], qkv[1], qkv[2])
        scale = Dh ** (-0.5)
        pos = torch.arange(S)
        off = torch.arange(W) * dil
        idx = pos[:, None] - off[None, :]
        mask = idx >= 0
        idx_c = torch.where(mask, idx, 0).reshape(-1)
        kg = k[:, :, idx_c, :].reshape(B, H, S, W, Dh)
        vg = v[:, :, idx_c, :].reshape(B, H, S, W, Dh)
        logits = torch.einsum('bhsd,bhswd->bhsw', q, kg) * scale
        logits = torch.where(mask[None, None, :, :], logits, -1000000000.0)
        attn = _softmax(logits, axis=-1)
        o = torch.einsum('bhsw,bhswd->bhsd', attn, vg)
        return (lambda x, *d: x.permute(*d))(o, 0, 2, 1, 3).reshape(B, S, D) @ wo

    def _B_ref(x, W_gate, W_up, W_down):
        gate = torch.einsum('bsd,df->bsf', x, W_gate)
        up = torch.einsum('bsd,df->bsf', x, W_up)
        gate = gate * (lambda x, dt: x.to(dt))(gate > 0, gate.dtype)
        h = gate * up
        return torch.einsum('bsf,fd->bsd', h, W_down)
    x = A_x
    mod = (_silu(c) @ w_mod).reshape(c.shape[0], 6, 1, -1)
    sa, ca, ga, sb, cb, gb = (mod[:, 0].clone(), mod[:, 1].clone(), mod[:, 2].clone(), mod[:, 3].clone(), mod[:, 4].clone(), mod[:, 5].clone())
    h = _layernorm(x, axis=-1) * (1 + ca) + sa
    x = x + ga * _A_ref(h, A_wqkv, A_wo)
    h = _layernorm(x, axis=-1) * (1 + cb) + sb
    x = x + gb * _B_ref(h, B_W_gate, B_W_up, B_W_down)
    return x
```

```python
import re

TRANS = ('v_exp_f32', 'v_log_f32', 'v_rcp_f32', 'v_rsq_f32', 'v_sqrt_f32', 'v_sin_f32', 'v_cos_f32', 'v_rcp_iflag_f32')

def _regs(tok):
    tok = tok.strip()
    tok = tok.lstrip('-')
    m = re.fullmatch(r'abs\((.*)\)', tok)
    if m: tok = m.group(1)
    tok = tok.strip('|')
    m = re.fullmatch(r'([vas])(\d+)', tok)
    if m: return [(m.group(1), int(m.group(2)))]
    m = re.fullmatch(r'([vas])\[(\d+):(\d+)\]', tok)
    if m: return [(m.group(1), i) for i in range(int(m.group(2)), int(m.group(3)) + 1)]
    if tok == 'vcc': return [('s', 'vcc_lo'), ('s', 'vcc_hi')]
    if tok in ('vcc_lo', 'vcc_hi', 'm0'): return [('s', tok)]
    if tok == 'exec': return [('s', 'exec_lo'), ('s', 'exec_hi')]
    if tok in ('exec_lo', 'exec_hi'): return [('s', tok)]
    return []

class Ins:
    __slots__ = ('text', 'op', 'cls', 'vw', 'vr', 'sw', 'sr', 'passes', 'A', 'B', 'C', 'D', 'dpp', 'wide_store', 'lds_dma', 'ws')
    def __init__(self, text):
        self.text = text
        t = text.split(';')[0].strip()
        parts = t.split(None, 1)
        op = parts[0]; self.op = op
        rest = parts[1] if len(parts) > 1 else ''
        ops = []; cur = ''; depth = 0
        for ch in rest:
            if ch in '[(': depth += 1
            if ch in '])': depth -= 1
            if ch == ',' and depth == 0:
                ops.append(cur.strip()); cur = ''
            else: cur += ch
        mods = ''
        if cur.strip():
            last = cur.strip().split(None, 1)
            ops.append(last[0])
            if len(last) > 1: mods = last[1]
        self.vw = []; self.vr = []; self.sw = []; self.sr = []
        self.passes = 0; self.A = self.B = self.C = self.D = []
        self.dpp = ('_dpp' in op) or any(x in mods for x in ('quad_perm', 'row_shr', 'row_shl', 'row_ror', 'row_mirror', 'row_half_mirror', 'row_bcast', 'row_newbcast', 'wave_'))
        self.wide_store = False; self.lds_dma = False
        self.ws = 1
        R = [_regs(o) for o in ops]
        def rd(rs):
            for r in rs:
                (self.sr if r[0] == 's' else self.vr).append(r)
        def wr(rs):
            for r in rs:
                (self.sw if r[0] == 's' else self.vw).append(r)
        if op == 's_nop':
            self.cls = 'nop'; self.ws = int(ops[0], 0) + 1
        elif op.startswith('v_mfma'):
            self.cls = 'mfma'
            self.D, self.A, self.B, self.C = R[0], R[1], R[2], R[3]
            self.passes = 8 if '32x32' in op else 4
            wr(R[0]); rd(R[1]); rd(R[2]); rd(R[3])
        elif op.startswith('v_cmp'):
            self.cls = 'valu'; wr(R[0]);
            for r in R[1:]: rd(r)
        elif op.startswith('v_readfirstlane') or op.startswith('v_readlane'):
            self.cls = 'readlane'; wr(R[0])
            for r in R[1:]: rd(r)
        elif op.startswith('v_permlane'):
            self.cls = 'permlane'; wr(R[0]); wr(R[1]); rd(R[0]); rd(R[1])
        elif op.startswith('v_'):
            base = op.replace('_e32', '').replace('_e64', '').replace('_dpp', '')
            self.cls = 'trans' if base in TRANS else ('dot' if base.startswith('v_dot') else 'valu')
            wr(R[0])
            i = 1
            if '_co_' in op: wr(R[1]); i = 2
            for r in R[i:]: rd(r)
            if base.startswith('v_fmac') or base.startswith('v_pk_fmac') or base.startswith('v_dot2c') or base.startswith('v_writelane') or self.dpp: rd(R[0])
            if base.startswith('v_cndmask') and len(ops) == 3: rd(_regs('vcc'))
        elif op.startswith('buffer_load') or op.startswith('global_load'):
            self.cls = 'vmem'
            if ' lds' in (' ' + mods) or 'load_lds' in op:
                self.lds_dma = True
                for r in R: rd(r)
            else:
                wr(R[0])
                for r in R[1:]: rd(r)
        elif op.startswith('buffer_store') or op.startswith('global_store') or op.startswith('buffer_atomic') or op.startswith('global_atomic'):
            self.cls = 'vmem'
            for r in R: rd(r)
            if 'x4' in op or 'x3' in op:
                self.wide_store = True
            if 'atomic' in op and 'sc0' in mods: wr(R[0])
        elif op.startswith('buffer_'):
            self.cls = 'vmem'
        elif op.startswith('ds_read') or op.startswith('ds_bpermute') or op.startswith('ds_permute') or op.startswith('ds_swizzle'):
            self.cls = 'ds'; wr(R[0])
            for r in R[1:]: rd(r)
        elif op.startswith('ds_'):
            self.cls = 'ds'
            for r in R: rd(r)
        elif op.startswith('s_'):
            self.cls = 'salu'
            if op.startswith('s_cmp') or op.startswith('s_cbranch') or op.startswith('s_branch') or op.startswith('s_waitcnt') or op in ('s_barrier', 's_endpgm', 's_sleep', 's_setprio') or op.startswith('s_bitcmp'):
                for r in R: rd(r)
            else:
                if R: wr(R[0])
                for r in R[1:]: rd(r)
                if 'saveexec' in op: wr(_regs('exec'))
        else:
            raise ValueError('unknown op ' + text)

VALUISH = ('valu', 'trans', 'dot', 'readlane', 'permlane')
def need(p, c):
    n = 0
    pvw = set(p.vw); psw = set(p.sw)
    if p.cls in VALUISH:
        if pvw:
            if c.cls == 'mfma' and pvw & set(c.vr): n = max(n, 2)
            if c.cls == 'readlane' and pvw & set(c.vr): n = max(n, 1)
            if c.cls == 'permlane' and pvw & set(c.vr): n = max(n, 2)
            if c.dpp and pvw & set(c.vr): n = max(n, 2)
            if p.cls == 'trans' and c.cls in VALUISH and c.cls != 'trans' and pvw & set(c.vr): n = max(n, 1)
            if p.cls == 'dot' and (pvw & (set(c.vr) | set(c.vw))):
                if not (c.op == p.op): n = max(n, 3)
                else:
                    n = max(n, 3) if (pvw & set(c.vr)) and not (set(c.vw) == pvw) else n
        if psw:
            if c.cls in VALUISH and psw & set(c.sr): n = max(n, 4 if c.cls == 'readlane' else 2)
            if c.cls == 'vmem' and psw & set(c.sr): n = max(n, 5)
    if p.cls == 'mfma':
        D = set(p.D)
        big = {4: 8, 8: 12}[p.passes]
        if c.cls == 'mfma':
            if D & (set(c.A) | set(c.B)): n = max(n, big)
            if D & set(c.C):
                if not (c.C == p.D and c.passes == p.passes): n = max(n, {4: 6, 8: 10}[p.passes])
            elif D & set(c.D): n = max(n, big)
        else:
            if D & (set(c.vr) | set(c.vw)): n = max(n, big)
        if c.cls in VALUISH and set(p.C) & set(c.vw): n = max(n, {4: 3, 8: 7}[p.passes])
    if p.cls == 'salu' and ('s', 'm0') in psw and c.lds_dma: n = max(n, 1)
    if p.wide_store and set(p.vr) & set(c.vw): n = max(n, 2)
    return n

def hazard_pass(lines):
    out = []
    hist = []
    label_pos = {}
    def required(c):
        req = 0; dist = 0
        for p in reversed(hist):
            if dist >= 20: break
            r = need(p, c) - dist
            if r > req: req = r
            dist += p.ws
        return req
    parsed = []
    for l in lines:
        s = l.strip()
        if not s or s.startswith(';') or s.startswith('.'):
            out.append(l); continue
        if s.endswith(':'):
            label_pos[s[:-1]] = len(parsed)
            out.append(l); continue
        c = Ins(s)
        r = required(c)
        while r > 0:
            n = min(r, 16)
            nop = Ins('s_nop %d' % (n - 1)); hist.append(nop); parsed.append(nop); out.append('    s_nop %d' % (n - 1)); r -= n
        hist.append(c); parsed.append(c); out.append(l)
        if c.op.startswith('s_cbranch') or c.op == 's_branch':
            tgt = s.split()[1]
            if tgt in label_pos:
                save = list(hist)
                for q in parsed[label_pos[tgt]: label_pos[tgt] + 24]:
                    rr = required(q)
                    if rr > 0:
                        raise RuntimeError('back-edge hazard: %s needs %d more wait states (branch %s)' % (q.text, rr, s))
                    hist.append(q)
                hist[:] = save
    return out

class Kern:
    def __init__(self, name, grid, block, lds=0, vgpr=256, sgpr=102, accum=None):
        self.name = name; self.grid = grid; self.block = block; self.lds = lds
        self.vgpr = vgpr; self.sgpr = sgpr; self.accum = accum
        self.lines = []
        self.nlabel = 0
    def __call__(self, s):
        for l in s.strip('\n').split('\n'):
            l = l.strip()
            if not l: continue
            m = re.search(r'offset:(\d+)', l)
            if m:
                o = int(m.group(1))
                if l.startswith('buffer_'): assert o <= 4095, l
                if l.startswith('global_'): assert o <= 4095, l
                if l.startswith('ds_'): assert o <= 65535, l
            self.lines.append('    ' + l)
    def label(self, name):
        self.lines.append(name + ':')
    def newlabel(self, base='L'):
        self.nlabel += 1
        return '%s_%s_%d' % (base, self.name, self.nlabel)
    def srd(self, d, base, nbytes, off=0):
        if off:
            self('s_add_u32 s%d, s%d, 0x%x' % (d, base, off))
            self('s_addc_u32 s%d, s%d, 0' % (d + 1, base + 1))
            self('s_and_b32 s%d, s%d, 0xffff' % (d + 1, d + 1))
        else:
            self('s_mov_b32 s%d, s%d' % (d, base))
            self('s_and_b32 s%d, s%d, 0xffff' % (d + 1, base + 1))
        self('s_mov_b32 s%d, 0x%x' % (d + 2, nbytes))
        self('s_mov_b32 s%d, 0x20000' % (d + 3))
    def launch_line(self):
        return '; @launch kernel=%s grid=(%d,1,1) block=(%d,1,1) lds=%d' % (self.name, self.grid, self.block, self.lds)
    def text(self, hazards=True):
        out = ['.globl %s' % self.name, '.p2align 8', '.type %s,@function' % self.name, '%s:' % self.name]
        body = self.lines + ['    s_endpgm']
        out += hazard_pass(body) if hazards else body
        return '\n'.join(out)
    def desc(self):
        accum = self.accum if self.accum is not None else min(256, (self.vgpr + 3) // 4 * 4)
        return '\n'.join([
            '.p2align 6',
            '.amdhsa_kernel %s' % self.name,
            '  .amdhsa_next_free_vgpr %d' % self.vgpr,
            '  .amdhsa_next_free_sgpr %d' % self.sgpr,
            '  .amdhsa_accum_offset %d' % accum,
            '  .amdhsa_group_segment_fixed_size 0',
            '  .amdhsa_kernarg_size 96',
            '  .amdhsa_user_sgpr_count 2',
            '  .amdhsa_user_sgpr_kernarg_segment_ptr 1',
            '  .amdhsa_system_sgpr_workgroup_id_x 1',
            '  .amdhsa_float_denorm_mode_32 3',
            '.end_amdhsa_kernel'])

def build(kerns, launches=None, header=''):
    launches = launches or kerns
    out = []
    if header: out.append(header.rstrip('\n'))
    for k in launches: out.append(k.launch_line())
    out.append('.amdgcn_target "amdgcn-amd-amdhsa--gfx950"')
    out.append('.text')
    for k in kerns: out.append(k.text())
    out.append('.section .rodata,"a"')
    for k in kerns: out.append(k.desc())
    return '\n'.join(out) + '\n'
```

```python
import sys, struct, argparse
from asmgen import *

NAME = 'adaLN_cond__sliding_local_dilated__glu_gated_reglu__prompt'
WS_EPOCH = 0x0
WS_FLAG = 0x1000
WS_MOD = 0x4000
WS_UB = 0x8000
WS_STATS = 0x20000
WS_O = 0x100000
WS_Y = 0x300000
WS_HH = 0x500000
WS_STAMP = 0xD00000
WS_END = 0xE00000
LOG2E = 1.4426950408889634
NEG = -1.0e30
LDS_TOTAL = 163840
H_HALF = 40960
WQ_BASE = 81920
WQ_CH = 24576
XCH = 147456
MISC = 155648
SLOT = 16384
L_MODP = MISC
L_CNT = MISC + 512
L_UBP = MISC + 1024
L_UBT = XCH
SPIN = 3000

def f32hex(x):
    return '0x%08x' % struct.unpack('<I', struct.pack('<f', x))[0]
def v(a, n=1): return 'v%d' % a if n == 1 else 'v[%d:%d]' % (a, a + n - 1)
def a_(a, n=1): return 'a%d' % a if n == 1 else 'a[%d:%d]' % (a, a + n - 1)
def s(a, n=1): return 's%d' % a if n == 1 else 's[%d:%d]' % (a, a + n - 1)

class Ctr:
    def __init__(self, k, name, mx):
        self.k = k; self.name = name; self.mx = mx; self.q = []
    def issue(self, tag='x'): self.q.append(tag)
    def wait(self, tag):
        idx = max([i for i, t in enumerate(self.q) if t == tag], default=-1)
        if idx < 0: return
        n = len(self.q) - 1 - idx
        if n > self.mx:
            n = self.mx; idx = len(self.q) - 1 - n
        self.k('s_waitcnt %s(%d)' % (self.name, n))
        self.q = self.q[idx + 1:]
    def wait_all(self):
        self.k('s_waitcnt %s(0)' % self.name); self.q = []
    def save(self): return list(self.q)
    def load(self, q): self.q = list(q)

sW = 3
sX, sWQ, sWO, sWG, sWU, sWD, sC, sWM, sOUT, sWS = [32 + 4 * i for i in range(10)]
sGU = 56
sG, sM, sTH, sCS, sR0, sTAG, sSLAB, sJ = range(72, 80)
sT0, sT1, sT2, sT3, sT4, sT5 = range(80, 86)
sSP = 86
sKH, sT = 87, 88
sEX = 90
sMSK = 92
sHW = 94
STAMP0 = 8
vL = 159
vX1 = 154
vTMP = 158

class Gen:
    def __init__(self, stop=99, stamps=False, mapping='A'):
        self.stop = stop; self.stamps = stamps; self.mapping = mapping
        self.k = Kern(NAME + '_kernel', 256, 512, lds=LDS_TOTAL, vgpr=256, sgpr=102, accum=160)
        self.vm = Ctr(self.k, 'vmcnt', 63); self.lg = Ctr(self.k, 'lgkmcnt', 15)
        self.nst = 0

    def stamp(self, i):
        if self.stamps:
            assert i < 12
            self.k('s_memtime %s' % s(STAMP0 + 2 * i, 2))
    def fence(self):
        self.k('s_nop 7'); self.k('s_nop 7')
    def unpack(self, dlo, dhi, src):
        k = self.k
        k('v_lshlrev_b32 %s, 16, %s' % (v(dlo), v(src)))
        k('v_and_b32 %s, 0xffff0000, %s' % (v(dhi), v(src)))
    def rnd(self, dst, src):
        k = self.k
        k('v_cvt_pk_bf16_f32 %s, %s, %s' % (v(dst), v(src), v(src)))
        k('v_and_b32 %s, 0xffff0000, %s' % (v(dst), v(dst)))
    def ld(self, dst, n, va, srd, soff, imm=0, sc1=False, tag='x'):
        op = {1: 'dword', 2: 'dwordx2', 4: 'dwordx4'}[n]
        self.k('buffer_load_%s %s, %s, %s, %s offen%s%s' % (op, dst, v(va), s(srd, 4), soff, ' offset:%d' % imm if imm else '', ' sc1' if sc1 else ''))
        self.vm.issue(tag)
    def st(self, src, n, va, srd, soff, imm=0, sc1=False, tag='st'):
        op = {1: 'dword', 2: 'dwordx2', 4: 'dwordx4'}[n]
        self.k('buffer_store_%s %s, %s, %s, %s offen%s%s' % (op, src, v(va), s(srd, 4), soff, ' offset:%d' % imm if imm else '', ' sc1' if sc1 else ''))
        self.vm.issue(tag)
    def dma(self, va, srd, soff, imm=0, tag='dma'):
        self.k('buffer_load_dwordx4 %s, %s, %s offen%s lds' % (v(va), s(srd, 4), soff, ' offset:%d' % imm if imm else ''))
        self.vm.issue(tag)
    def dsr(self, op, dst, va, off=0, tag='x'):
        self.k('%s %s, %s%s' % (op, dst, v(va), ' offset:%d' % off if off else ''))
        self.lg.issue(tag)
    def dsw(self, op, va, src, off=0, tag='w'):
        self.k('%s %s, %s%s' % (op, v(va), src, ' offset:%d' % off if off else ''))
        self.lg.issue(tag)
    def barrier(self): self.k('s_barrier')
    def xlane(self, r, t, op, steps=(16, 32)):
        k = self.k
        for st in steps:
            k('v_mov_b32 %s, %s' % (v(t), v(r)))
            k('v_permlane%d_swap_b32 %s, %s' % (st, v(r), v(t)))
            k('%s %s, %s, %s' % (op, v(r), v(r), v(t)))
    def xlane_multi(self, rs, ts, op, steps=(16, 32)):
        k = self.k
        for st in steps:
            for r, t in zip(rs, ts): k('v_mov_b32 %s, %s' % (v(t), v(r)))
            for r, t in zip(rs, ts): k('v_permlane%d_swap_b32 %s, %s' % (st, v(r), v(t)))
            for r, t in zip(rs, ts): k('%s %s, %s, %s' % (op, v(r), v(r), v(t)))
    def allreduce16(self, regs, op='v_add_f32'):
        for mod in ('quad_perm:[1,0,3,2]', 'quad_perm:[2,3,0,1]', 'row_half_mirror', 'row_mirror'):
            for r in regs:
                self.k('%s_dpp %s, %s, %s %s row_mask:0xf bank_mask:0xf' % (op, v(r), v(r), v(r), mod))
    def reduce63(self, regs):
        for mod, rm in (('row_shr:1', 0xf), ('row_shr:2', 0xf), ('row_shr:4', 0xf), ('row_shr:8', 0xf), ('row_bcast:15', 0xa), ('row_bcast:31', 0xc)):
            for r in regs:
                self.k('v_add_f32_dpp %s, %s, %s %s row_mask:0x%x bank_mask:0xf' % (v(r), v(r), v(r), mod, rm))
    def poll(self, issue, tagregs, tmp, tagoff=0, mask=None, sleep=1, preloaded=False):
        k = self.k
        L = k.newlabel('POLL'); D = k.newlabel('PDONE')
        k('s_add_u32 %s, %s, %d' % (s(sT5), s(sTAG), tagoff))
        k('s_movk_i32 %s, %d' % (s(sSP), SPIN))
        if preloaded:
            C = k.newlabel('PCHK'); q = self.vm.save()
            k('s_branch %s' % C)
        k.label(L)
        issue()
        self.vm.wait_all()
        if preloaded:
            k.label(C); self.vm.load(q)
        first = True
        for i in range(0, len(tagregs)):
            if first:
                k('v_xor_b32 %s, %s, %s' % (v(tmp), s(sT5), v(tagregs[i]))); first = False
            else:
                k('v_xor_b32 %s, %s, %s' % (v(tagregs[i]), s(sT5), v(tagregs[i])))
        rest = tagregs[1:]
        while rest:
            if len(rest) >= 2:
                k('v_or3_b32 %s, %s, %s, %s' % (v(tmp), v(tmp), v(rest[0]), v(rest[1]))); rest = rest[2:]
            else:
                k('v_or_b32 %s, %s, %s' % (v(tmp), v(tmp), v(rest[0]))); rest = rest[1:]
        k('v_cmp_ne_u32 vcc, 0, %s' % v(tmp))
        if mask is not None:
            k('s_and_b64 vcc, vcc, %s' % mask)
        k('s_cbranch_vccz %s' % D)
        if sleep: k('s_sleep %d' % sleep)
        k('s_sub_u32 %s, %s, 1' % (s(sSP), s(sSP)))
        k('s_cmp_lg_u32 %s, 0' % s(sSP))
        k('s_cbranch_scc1 %s' % L)
        k.label(D)
    def flag_store(self, phase, tmpa, tmpd):
        k = self.k
        k('s_lshl_b32 %s, %s, 7' % (s(sT0), s(sG)))
        k('s_lshl_b32 %s, %s, 2' % (s(sT1), s(sM)))
        k('s_add_u32 %s, %s, %s' % (s(sT0), s(sT0), s(sT1)))
        k('s_add_u32 %s, %s, 0x%x' % (s(sT0), s(sT0), WS_FLAG + phase * 2048))
        k('s_add_u32 %s, %s, %d' % (s(sT1), s(sTAG), 1 + phase))
        k('v_mov_b32 %s, 0' % v(tmpa))
        k('v_mov_b32 %s, %s' % (v(tmpd), s(sT1)))
        k('s_mov_b64 exec, 1')
        self.st(v(tmpd), 1, tmpa, sWS, s(sT0), sc1=True, tag='flag')
        k('s_mov_b64 exec, -1')
    def flag_poll(self, phase, mask, va, vd, tmp):
        k = self.k
        k('s_lshl_b32 %s, %s, 7' % (s(sT0), s(sG)))
        k('s_add_u32 %s, %s, 0x%x' % (s(sT0), s(sT0), WS_FLAG + phase * 2048))
        self.poll(lambda: self.ld(v(vd), 1, va, sWS, s(sT0), sc1=True), [vd], tmp, tagoff=1 + phase, mask=mask)
    def finish(self):
        self.k('s_branch FIN')

    def p0(self):
        k = self.k; vm = self.vm; lg = self.lg
        k('s_cmp_ge_u32 s2, 256')
        k('s_cbranch_scc1 END')
        k('s_load_dwordx16 s[8:23], s[0:1], 0')
        k('s_load_dwordx8 s[24:31], s[0:1], 64')
        k('v_and_b32 %s, 63, v0' % v(vL))
        k('v_lshrrev_b32 v1, 6, v0')
        k('v_readfirstlane_b32 %s, v1' % s(sW))
        k('s_and_b32 s4, s2, 7')
        k('s_lshr_b32 s5, s2, 3')
        if self.mapping == 'A':
            k('s_lshr_b32 s6, s5, 4')
            k('s_lshl_b32 %s, s4, 1' % s(sG))
            k('s_add_u32 %s, %s, s6' % (s(sG), s(sG)))
            k('s_and_b32 %s, s5, 15' % s(sM))
        else:
            k('s_lshr_b32 s6, s4, 1')
            k('s_lshl_b32 s6, s6, 2')
            k('s_lshr_b32 s7, s5, 3')
            k('s_add_u32 %s, s6, s7' % s(sG))
            k('s_and_b32 s6, s4, 1')
            k('s_lshl_b32 s6, s6, 3')
            k('s_and_b32 s7, s5, 7')
            k('s_add_u32 %s, s6, s7' % s(sM))
        k('s_and_b32 %s, %s, 7' % (s(sJ), s(sM)))
        k('s_lshr_b32 s6, %s, 3' % s(sM))
        k('s_and_b32 %s, %s, 1' % (s(sTH), s(sJ)))
        k('s_lshr_b32 s7, %s, 1' % s(sJ))
        k('s_lshl_b32 %s, s6, 2' % s(sCS))
        k('s_add_u32 %s, %s, s7' % (s(sCS), s(sCS)))
        k('s_mul_i32 %s, s6, 7' % s(sSLAB))
        k('s_add_u32 %s, %s, %s' % (s(sSLAB), s(sSLAB), s(sJ)))
        k('s_lshl_b32 %s, %s, 7' % (s(sR0), s(sG)))
        k('s_lshl_b32 s7, %s, 6' % s(sTH))
        k('s_add_u32 %s, %s, s7' % (s(sR0), s(sR0)))
        k('s_lshr_b32 %s, %s, 2' % (s(sKH), s(sW)))
        k('s_and_b32 %s, %s, 3' % (s(sT), s(sW)))
        k('s_lshl_b32 %s, s4, 8' % s(sT0))
        k('s_lshl_b32 %s, s5, 4' % s(sT1))
        k('s_add_u32 %s, %s, %s' % (s(sT0), s(sT0), s(sT1)))
        k('s_lshl_b32 %s, s4, 9' % s(sT1))
        k('s_lshl_b32 %s, s5, 5' % s(sT2))
        k('s_add_u32 %s, %s, %s' % (s(sT1), s(sT1), s(sT2)))
        k('s_add_u32 %s, %s, %d' % (s(sT1), s(sT1), 2048 - 512))
        k('s_cmp_lt_u32 s2, 128')
        k('s_cselect_b32 %s, %s, %s' % (s(sT2), s(sT0), s(sT1)))
        k('v_lshlrev_b32 v2, 1, v0')
        k('s_movk_i32 s6, 6144')
        k('v_mul_u32_u24 v3, s6, v0')
        k('v_lshrrev_b32 v4, 5, %s' % v(vL))
        k('v_lshl_add_u32 v4, v1, 1, v4')
        k('v_and_b32 v5, 31, %s' % v(vL))
        k('v_add_u32 v6, %s, v4' % s(sR0))
        k('v_subrev_u32 v7, 16, v6')
        k('v_max_i32 v7, 0, v7')
        k('v_lshlrev_b32 v6, 10, v6')
        k('v_lshlrev_b32 v7, 10, v7')
        k('v_lshl_add_u32 v6, v5, 4, v6')
        k('v_lshl_add_u32 v7, v5, 4, v7')
        k('v_xor_b32 v8, v5, v4')
        k('v_lshlrev_b32 v8, 4, v8')
        k('v_lshl_add_u32 v8, v4, 9, v8')
        k('v_add_u32 v9, %d, v8' % H_HALF)
        k('v_lshrrev_b32 v10, 3, %s' % v(vL))
        k('v_and_b32 v11, 7, %s' % v(vL))
        k('v_and_b32 v12, 2, v10')
        k('v_xor_b32 v11, v11, v12')
        k('v_and_b32 v12, 1, v1')
        k('v_lshlrev_b32 v12, 2, v12')
        k('v_xor_b32 v11, v11, v12')
        k('v_lshl_add_u32 v12, v1, 3, v10')
        k('s_movk_i32 s6, 3072')
        k('v_mul_u32_u24 v12, s6, v12')
        k('v_lshl_add_u32 v12, v11, 4, v12')
        k('s_lshl_b32 s7, %s, 7' % s(sCS))
        k('v_add_u32 v12, s7, v12')
        k('v_mov_b32 v13, 0')
        k('v_lshlrev_b32 v14, 4, v5')
        k('s_waitcnt lgkmcnt(0)')
        k.srd(sC, 22, 1024)
        k.srd(sWM, 24, 512 * 6144)
        self.k('buffer_load_ushort v16, v2, %s, 0 offen' % s(sC, 4)); vm.issue('c')
        self.ld(v(20, 4), 4, 3, sWM, s(sT2), tag='wm')
        self.ld(v(24, 4), 4, 3, sWM, s(sT2), imm=16, tag='wm2')
        k.srd(sWS, 30, WS_END)
        self.ld(v(15), 1, 13, sWS, '0', imm=WS_EPOCH, sc1=True, tag='ep')
        k.srd(sX, 8, 2048 * 1024)
        for p in range(5):
            if p >= 2: k('s_mov_b32 %s, %d' % (s(sT0), (p - 1) * 16384))
            for i in range(2):
                self.ld(v(112 + 8 * p + 4 * i, 4), 4, 7 if p == 0 else 6, sX, '0' if p < 2 else s(sT0), imm=512 * i, tag='x%d' % p)
        k.srd(sWQ, 10, 512 * 3072)
        k('s_mul_i32 %s, %s, 3072' % (s(sT1), s(sW)))
        for c in range(3):
            k('s_add_u32 m0, %s, %d' % (s(sT1), WQ_BASE + c * WQ_CH))
            k('s_mov_b32 %s, %d' % (s(sT0), c * 64 * 3072))
            for mt in range(3):
                self.dma(12, sWQ, s(sT0), imm=mt * 1024, tag='wq')
        k.srd(sWO, 12, 512 * 1024)
        k.srd(sWG, 16, 512 * 3584)
        k.srd(sWU, 18, 512 * 3584)
        k.srd(sWD, 20, 1792 * 1024)
        k.srd(sOUT, 26, 2048 * 1024)
        self.stamp(0)
        k('v_mov_b32 v17, %d' % L_CNT)
        k('v_lshl_add_u32 v17, %s, 2, v17' % v(vL))
        self.dsw('ds_write_b32', 17, v(13))
        vm.wait('c')
        k('v_lshlrev_b32 v16, 16, v16')
        k('v_mul_f32 v17, %s, v16' % f32hex(-LOG2E))
        k('v_exp_f32 v17, v17')
        k('v_add_f32 v17, 1.0, v17')
        k('v_rcp_f32 v17, v17')
        k('v_mul_f32 v16, v16, v17')
        self.rnd(16, 16)
        k('v_mov_b32 v18, %d' % L_MODP)
        k('v_lshl_add_u32 v18, v1, 6, v18')
        def proc8(src, dst, off):
            for d in range(4): self.unpack(dst + 2 * d, dst + 2 * d + 1, src + d)
            for e in range(8): k('v_mul_f32 %s, v16, %s' % (v(dst + e), v(dst + e)))
            self.reduce63(range(dst, dst + 8))
            k('s_mov_b32 exec_lo, 0')
            k('s_mov_b32 exec_hi, 0x80000000')
            self.dsw('ds_write_b128', 18, v(dst, 4), off)
            self.dsw('ds_write_b128', 18, v(dst + 4, 4), off + 16)
            k('s_mov_b64 exec, -1')
        vm.wait('wm')
        proc8(20, 32, 0)
        k('s_cmp_lt_u32 s2, 128')
        k('s_cbranch_scc1 MOD8')
        q = vm.save()
        vm.wait('wm2')
        proc8(24, 40, 32)
        vm.load(q)
        k.label('MOD8')
        lg.wait_all()
        self.barrier()
        vm.wait('ep')
        k('v_readfirstlane_b32 %s, v15' % s(sTAG))
        k('s_add_u32 %s, %s, 1' % (s(sTAG), s(sTAG)))
        k('s_cmp_lg_u32 %s, 0' % s(sW))
        k('s_cbranch_scc1 MODPUB_DONE')
        k('v_and_b32 v17, 3, %s' % v(vL))
        k('v_lshlrev_b32 v18, 4, v17')
        k('v_add_u32 v18, %d, v18' % L_MODP)
        for w in range(8): self.dsr('ds_read_b128', v(32 + 4 * w, 4), 18, 64 * w)
        k('s_lshr_b32 %s, %s, 3' % (s(sT0), s(sT2)))
        k('v_add_u32 v19, %s, v17' % s(sT0))
        k('v_and_b32 v20, 1, v19')
        k('v_lshrrev_b32 v21, 1, v19')
        k('v_and_b32 v22, 31, v21')
        k('v_lshrrev_b32 v21, 5, v21')
        k('v_lshlrev_b32 v21, 10, v21')
        k('v_lshl_add_u32 v21, v20, 9, v21')
        k('v_lshl_add_u32 v21, v22, 4, v21')
        lg.wait_all()
        for st in (4, 2, 1):
            for w in range(st):
                for e in range(4): k('v_add_f32 %s, %s, %s' % (v(32 + 4 * w + e), v(32 + 4 * w + e), v(32 + 4 * (w + st) + e)))
        for e in range(4): self.rnd(32 + e, 32 + e)
        k('s_lshr_b32 %s, %s, 10' % (s(sT0), s(sT2)))
        k('s_cmp_eq_u32 %s, 1' % s(sT0))
        k('s_cselect_b32 %s, 1.0, 0' % s(sT1))
        k('s_cmp_eq_u32 %s, 4' % s(sT0))
        k('s_cselect_b32 %s, 1.0, %s' % (s(sT1), s(sT1)))
        for e in range(4): k('v_add_f32 %s, %s, %s' % (v(32 + e), s(sT1), v(32 + e)))
        k('v_cvt_pk_bf16_f32 v36, v32, v33')
        k('v_mov_b32 v37, %s' % s(sTAG))
        k('v_cvt_pk_bf16_f32 v38, v34, v35')
        k('v_mov_b32 v39, %s' % s(sTAG))
        k('s_cmp_lt_u32 s2, 128')
        k('s_cselect_b32 exec_lo, 3, 15')
        k('s_mov_b32 exec_hi, 0')
        k('s_movk_i32 %s, 0x%x' % (s(sT0), WS_MOD))
        k('buffer_store_dwordx4 v[36:39], v21, %s, %s offen sc1' % (s(sWS, 4), s(sT0)))
        k('s_mov_b64 exec, -1')
        k.label('MODPUB_DONE')
        self.fence()
        self.stamp(1)
        XH = lambda p, i, e: (16 if i == 0 else 72) + 8 * p + e
        ones = 'v13'
        k('v_mov_b32 v13, 0x3f803f80')
        SUM, SQ = 56, 61
        TMPA = 66
        for p in range(5):
            pass
        for p in range(5):
            vm.wait('x%d' % p)
            for d in range(8):
                r = 112 + 8 * p + d
                if d == 0:
                    k('v_dot2_f32_bf16 %s, %s, %s, 0' % (v(SUM + p), v(r), ones))
                    k('v_dot2_f32_bf16 %s, %s, %s, 0' % (v(SQ + p), v(r), v(r)))
                else:
                    k('v_dot2_f32_bf16 %s, %s, %s, %s' % (v(SUM + p), v(r), ones, v(SUM + p)))
                    k('v_dot2_f32_bf16 %s, %s, %s, %s' % (v(SQ + p), v(r), v(r), v(SQ + p)))
            for i in range(2):
                for d in range(4):
                    self.unpack(XH(p, i, 2 * d), XH(p, i, 2 * d + 1), 112 + 8 * p + 4 * i + d)
        regs = list(range(SUM, SUM + 10))
        self.allreduce16(regs)
        self.xlane_multi(regs, list(range(112, 122)), 'v_add_f32', steps=(16,))
        for p in range(5):
            k('v_mul_f32 %s, %s, %s' % (v(SUM + p), f32hex(1.0 / 512), v(SUM + p)))
            k('v_mul_f32 %s, %s, %s' % (v(SQ + p), f32hex(1.0 / 512), v(SQ + p)))
        for p in range(5):
            k('v_fma_f32 %s, -%s, %s, %s' % (v(SQ + p), v(SUM + p), v(SUM + p), v(SQ + p)))
        for p in range(5):
            k('v_max_f32 %s, 0, %s' % (v(SQ + p), v(SQ + p)))
        for p in range(5):
            k('v_add_f32 %s, %s, %s' % (v(SQ + p), f32hex(1e-5), v(SQ + p)))
        for p in range(5):
            k('v_rsq_f32 %s, %s' % (v(SQ + p), v(SQ + p)))
        for p in range(5):
            k('v_mul_f32 %s, -%s, %s' % (v(SUM + p), v(SUM + p), v(SQ + p)))
        for p in range(5):
            for i in range(2):
                for e in range(8):
                    k('v_fma_f32 %s, %s, %s, %s' % (v(XH(p, i, e)), v(XH(p, i, e)), v(SQ + p), v(SUM + p)))
        self.stamp(2)
        MB = (56, 112)
        k('s_movk_i32 %s, 0x%x' % (s(sT0), WS_MOD))
        def issue():
            for i in range(2):
                for vec in range(2):
                    for q in range(2):
                        self.ld(v(MB[i] + 8 * vec + 4 * q, 4), 4, 14, sWS, s(sT0), imm=vec * 2048 + i * 1024 + q * 512, sc1=True)
        tags = [MB[i] + 4 * u + t for i in range(2) for u in range(4) for t in (1, 3)]
        self.poll(issue, tags, 128)
        self.stamp(3)
        for i in range(2):
            for u in range(8):
                r = MB[i] + 2 * u
                self.unpack(r + 1, r, r)
        self.XH = XH; self.MB = MB
    def hrow(self, p, i):
        k = self.k; XH = self.XH; MB = self.MB
        M = lambda vec, e: MB[i] + 8 * vec + (e ^ 1)
        ops = []
        for e in range(8):
            ops.append(lambda e=e: k('v_fma_f32 %s, %s, %s, %s' % (v(XH(p, i, e)), v(XH(p, i, e)), v(M(1, e)), v(M(0, e)))))
        for d in range(4):
            ops.append(lambda d=d: k('v_cvt_pk_bf16_f32 %s, %s, %s' % (v(XH(p, i, d)), v(XH(p, i, 2 * d)), v(XH(p, i, 2 * d + 1)))))
        ops.append(lambda: self.dsw('ds_write_b128', 8 + i, v(XH(p, i, 0), 4), p * 8192, tag='hw'))
        return ops

    def p1(self):
        k = self.k; vm = self.vm; lg = self.lg
        for p in range(5):
            for op in self.hrow(p, 0): op()
        lg.wait_all()
        self.barrier()
        self.stamp(4)
        k('s_cmp_ge_u32 %s, 4' % s(sW))
        k('s_cbranch_scc1 P1_HELP')
        self.p1_compute()
        k('s_branch P1_DONE')
        k.label('P1_HELP')
        self.fence()
        vm.load([]); lg.load([])
        self.p1_helper()
        k.label('P1_DONE')
        self.fence()

    def p1_compute(self):
        k = self.k; vm = self.vm; lg = self.lg
        k('s_setprio 2')
        k('v_lshrrev_b32 v2, 4, %s' % v(vL))
        k('v_bfe_u32 v3, %s, 2, 2' % v(vL))
        k('v_bfe_u32 v4, %s, 1, 1' % v(vL))
        k('s_lshl_b32 %s, %s, 1' % (s(sT0), s(sW)))
        k('v_add_u32 v4, %s, v4' % s(sT0))
        k('v_and_b32 v5, 2, v3')
        k('v_xor_b32 v4, v4, v5')
        k('v_and_b32 v5, 1, v2')
        k('v_lshlrev_b32 v5, 2, v5')
        k('v_xor_b32 v4, v4, v5')
        k('v_mul_u32_u24 v1, 3072, v2')
        k('v_lshl_add_u32 v1, v3, 7, v1')
        k('v_lshl_add_u32 v1, v4, 4, v1')
        k('v_and_b32 v5, 1, %s' % v(vL))
        k('v_lshl_add_u32 v1, v5, 3, v1')
        k('v_add_u32 v1, %d, v1' % WQ_BASE)
        k('v_and_b32 v3, 15, %s' % v(vL))
        for j in range(4):
            k('v_add_u32 v10, %d, v2' % (4 * j))
            k('v_xor_b32 v10, v10, v3')
            k('v_lshlrev_b32 v10, 4, v10')
            k('v_lshl_add_u32 %s, v3, 9, v10' % v(4 + j))
        ACC = 16
        aK = lambda t: 16 + 4 * t
        aV = lambda t: 36 + 4 * t
        aQ = lambda t: 56 + 4 * (t - 1)
        def FR(buf, f): return 32 * buf + 4 * f
        def reads(sx):
            buf = sx & 1; c = sx >> 1; u = sx & 1
            wo = (c % 3) * WQ_CH + u * 12288
            L = []
            def wr(mt):
                L.append(lambda: self.dsr('ds_read_b64_tr_b16', a_(FR(buf, mt), 2), 1, wo + mt * 1024, tag=('f', sx, mt)))
                L.append(lambda: self.dsr('ds_read_b64_tr_b16', a_(FR(buf, mt) + 2, 2), 1, wo + mt * 1024 + 512, tag=('f', sx, mt)))
            def hr(t):
                L.append(lambda: self.dsr('ds_read_b128', a_(FR(buf, 3 + t), 4), 4 + (sx & 3), t * 8192 + ((sx & 7) >> 2) * 256, tag=('f', sx, 3 + t)))
            wr(1); hr(0); wr(2); hr(1); wr(0); hr(2); hr(3); hr(4)
            return L
        def mfmas(sx):
            buf = sx & 1
            L = []
            for t in range(5):
                L.append((aK(t), FR(buf, 1), FR(buf, 3 + t), (1, 3 + t)))
                L.append((aV(t), FR(buf, 3 + t), FR(buf, 2), (2, 3 + t)))
                if t: L.append((aQ(t), FR(buf, 0), FR(buf, 3 + t), (0, 3 + t)))
            return L
        extra = []
        for p in range(5): extra += self.hrow(p, 1)
        for r in reads(0): r()
        for sx in range(16):
            if sx & 1:
                lg.wait_all()
                self.barrier()
            if sx == 7:
                for j in range(4): k('v_add_u32 %s, %d, %s' % (v(4 + j), H_HALF, v(4 + j)))
            nxt = reads(sx + 1) if sx < 15 else []
            for i, (acc, A, B, deps) in enumerate(mfmas(sx)):
                for d in deps: lg.wait(('f', sx, d))
                k('v_mfma_f32_16x16x32_bf16 %s, %s, %s, %s' % (v(acc, 4), a_(A, 4), a_(B, 4), '0' if sx == 0 else v(acc, 4)))
                if nxt: nxt.pop(0)()
                if extra and sx < 6: extra.pop(0)()
            assert not nxt
        assert not extra
        self.stamp(5)
        BP, BC, BP1 = 72, 76, 80
        ONES = 84
        k('v_lshlrev_b32 v10, 2, v2')
        k('v_sub_u32 v10, v3, v10')
        k('v_mov_b32 v11, %s' % f32hex(NEG))
        for r in range(4):
            k('v_subrev_u32 v12, %d, v10' % r)
            k('v_and_b32 v13, 0x80000001, v12')
            k('v_cmp_eq_u32 vcc, 0, v13')
            k('v_cndmask_b32 %s, v11, 0, vcc' % v(BC + r))
            k('v_cmp_eq_u32 vcc, 0x80000000, v13')
            k('v_cndmask_b32 %s, v11, 0, vcc' % v(BP + r))
        k('s_cmp_eq_u32 %s, 0' % s(sR0))
        k('s_cselect_b64 vcc, -1, 0')
        for r in range(4):
            k('v_cndmask_b32 %s, %s, v11, vcc' % (v(BP1 + r), v(BP + r)))
            k('v_mov_b32 %s, 0x3f803f80' % v(ONES + r))
        KP, VP, QP = 88, 98, 108
        for t in range(5):
            for d in range(2):
                k('v_cvt_pk_bf16_f32 %s, %s, %s' % (v(KP + 2 * t + d), v(aK(t) + 2 * d), v(aK(t) + 2 * d + 1)))
            if t:
                for d in range(2):
                    k('v_cvt_pk_bf16_f32 %s, %s, %s' % (v(QP + 2 * (t - 1) + d), v(aQ(t) + 2 * d), v(aQ(t) + 2 * d + 1)))
        for t in range(5):
            for d in range(2):
                k('v_cvt_pk_bf16_f32 %s, %s, %s' % (v(VP + 2 * t + d), v(aV(t) + 2 * d), v(aV(t) + 2 * d + 1)))
        S = lambda t: 16 + 8 * (t - 1)
        for t in range(1, 5):
            k('v_mfma_f32_16x16x16_bf16 %s, %s, %s, %s' % (v(S(t), 4), v(KP + 2 * (t - 1), 2), v(QP + 2 * (t - 1), 2), v(BP1 if t == 1 else BP, 4)))
            k('v_mfma_f32_16x16x16_bf16 %s, %s, %s, %s' % (v(S(t) + 4, 4), v(KP + 2 * t, 2), v(QP + 2 * (t - 1), 2), v(BC, 4)))
        k('v_lshrrev_b32 v10, 1, v2')
        k('v_lshlrev_b32 v10, 8, v10')
        k('v_lshl_add_u32 v10, v3, 4, v10')
        k('v_and_b32 v11, 1, v2')
        k('v_lshl_add_u32 v10, v11, 3, v10')
        k('s_lshl_b32 %s, %s, 10' % (s(sT0), s(sR0)))
        k('s_lshl_b32 %s, %s, 2' % (s(sT1), s(sCS)))
        k('s_add_u32 %s, %s, %s' % (s(sT1), s(sT1), s(sW)))
        k('s_lshl_b32 %s, %s, 9' % (s(sT1), s(sT1)))
        k('s_add_u32 %s, %s, %s' % (s(sT0), s(sT0), s(sT1)))
        k('s_add_u32 %s, %s, 0x%x' % (s(sT0), s(sT0), WS_O))
        k('s_mov_b32 %s, %s' % (s(sT2), f32hex(0.25 * LOG2E)))
        MX = 48; TM = 52
        T4 = range(1, 5)
        for t in T4: k('v_max3_f32 %s, %s, %s, %s' % (v(MX + t - 1), v(S(t)), v(S(t) + 1), v(S(t) + 2)))
        for t in T4: k('v_max3_f32 %s, %s, %s, %s' % (v(MX + t - 1), v(MX + t - 1), v(S(t) + 3), v(S(t) + 4)))
        for t in T4: k('v_max3_f32 %s, %s, %s, %s' % (v(MX + t - 1), v(MX + t - 1), v(S(t) + 5), v(S(t) + 6)))
        for t in T4: k('v_max_f32 %s, %s, %s' % (v(MX + t - 1), v(MX + t - 1), v(S(t) + 7)))
        self.xlane_multi(list(range(MX, MX + 4)), list(range(TM, TM + 4)), 'v_max_f32')
        for t in T4: k('v_mul_f32 %s, %s, %s' % (v(MX + t - 1), s(sT2), v(MX + t - 1)))
        for t in T4:
            for e in range(8): k('v_fma_f32 %s, %s, %s, -%s' % (v(S(t) + e), v(S(t) + e), s(sT2), v(MX + t - 1)))
        for t in T4:
            for e in range(8): k('v_exp_f32 %s, %s' % (v(S(t) + e), v(S(t) + e)))
        PP = 116
        for t in T4:
            for d in range(4): k('v_cvt_pk_bf16_f32 %s, %s, %s' % (v(PP + 4 * (t - 1) + d), v(S(t) + 2 * d), v(S(t) + 2 * d + 1)))
        for t in T4:
            k('v_mfma_f32_16x16x32_bf16 %s, %s, %s, 0' % (v(S(t), 4), v(VP + 2 * (t - 1), 4), v(PP + 4 * (t - 1), 4)))
            k('v_mfma_f32_16x16x32_bf16 %s, %s, %s, 0' % (v(S(t) + 4, 4), v(ONES, 4), v(PP + 4 * (t - 1), 4)))
        for t in T4: k('v_rcp_f32 %s, %s' % (v(MX + t - 1), v(S(t) + 4)))
        for t in T4:
            for r in range(4): k('v_mul_f32 %s, %s, %s' % (v(S(t) + r), v(S(t) + r), v(MX + t - 1)))
            k('v_cvt_pk_bf16_f32 %s, %s, %s' % (v(S(t) + 4), v(S(t)), v(S(t) + 1)))
            k('v_cvt_pk_bf16_f32 %s, %s, %s' % (v(S(t) + 5), v(S(t) + 2), v(S(t) + 3)))
            self.st(v(S(t) + 4, 2), 2, 10, sWS, s(sT0), sc1=True)
            if t < 4: k('s_add_u32 %s, %s, 16384' % (s(sT0), s(sT0)))
        self.stamp(6)
        vm.wait_all()
        k('v_mov_b32 v11, %d' % L_CNT)
        k('v_mov_b32 v12, 1')
        k('s_mov_b64 exec, 1')
        k('ds_add_rtn_u32 v13, v11, v12')
        k('s_mov_b64 exec, -1')
        lg.wait_all()
        k('v_readfirstlane_b32 %s, v13' % s(sT2))
        k('s_cmp_lg_u32 %s, 3' % s(sT2))
        k('s_cbranch_scc1 P1_NOFLAG')
        self.flag_store(0, 11, 12)
        k.label('P1_NOFLAG')
        k('s_setprio 0')
        vm.load([])

    def dma_addr_setup(self):
        k = self.k
        k('s_sub_u32 %s, %s, 4' % (s(sHW), s(sW)))
    def item_slot(self, n):
        if n < 5: return 4 + n
        if n < 9: return n - 5
        return self.item_slot(n - 9)
    def dma_gu(self, n):
        k = self.k
        U, kc = n >> 3, n & 7
        for i in range(4):
            k('s_add_u32 m0, %s, %d' % (s(sT4), self.item_slot(n) * SLOT + i * 4096))
            k('s_mov_b32 %s, %d' % (s(sT0), (64 * kc + 16 * i) * 3584 + U * 128))
            self.dma(141, sGU, s(sT0), tag=('it', n))
    def dchunk_rows(self, d, kh):
        half = d // 7; i = d % 7
        return 128 * (2 * i + kh) + 64 * half
    def dma_d(self, d, nw):
        k = self.k
        n = 16 + d
        for i in range(16 // nw):
            pc = i * nw
            kh, o = pc >> 3, pc & 7
            k('s_add_u32 m0, %s, %d' % (s(sT4), self.item_slot(n) * SLOT + pc * 1024))
            k('s_mov_b32 %s, %d' % (s(sT0), (self.dchunk_rows(d, kh) + 8 * o) * 1024))
            self.dma(142, sWD, s(sT0), tag=('it', n))

    def p1_helper(self):
        k = self.k; vm = self.vm; lg = self.lg
        k('s_sub_u32 %s, %s, 4' % (s(sHW), s(sW)))
        for p in range(5):
            for op in self.hrow(p, 1): op()
        k('s_and_b32 s4, s2, 7')
        k('s_lshr_b32 s5, s2, 3')
        k('s_mul_i32 s6, s4, 7')
        k('s_lshr_b32 s7, s5, 2')
        k('s_add_u32 s6, s6, s7')
        k('s_and_b32 s7, s5, 3')
        k('s_lshl_b32 s6, s6, 2')
        k('s_add_u32 s6, s6, s7')
        k('s_cmp_ge_u32 s6, 112')
        k('s_cselect_b32 %s, %s, %s' % (s(sGU), s(sWU), s(sWG)))
        k('s_cselect_b32 %s, %s, %s' % (s(sGU + 1), s(sWU + 1), s(sWG + 1)))
        k('s_mov_b32 %s, 0x%x' % (s(sGU + 2), 512 * 3584))
        k('s_mov_b32 %s, 0x20000' % s(sGU + 3))
        k('s_cselect_b32 s7, 112, 0')
        k('s_sub_u32 s7, s6, s7')
        k('s_lshl_b32 s7, s7, 5')
        k('v_subrev_u32 v1, 256, v0')
        k('s_movk_i32 %s, 7168' % s(sT0))
        k('v_mul_u32_u24 v2, %s, v1' % s(sT0))
        for r in range(2):
            for h in range(2):
                self.ld(v(16 + 8 * r + 4 * h, 4), 4, 2, sGU, 's7', imm=r * 3584 + 16 * h, tag='ubw')
        k('v_lshrrev_b32 v3, 7, v1')
        k('v_lshlrev_b32 v3, 10, v3')
        k('v_bfe_u32 v4, v1, 1, 1')
        k('v_lshl_add_u32 v3, v4, 9, v3')
        k('v_bfe_u32 v4, v1, 2, 5')
        k('v_lshl_add_u32 v3, v4, 4, v3')
        k('v_and_b32 v4, 1, v1')
        k('v_lshl_add_u32 v3, v4, 3, v3')
        k('s_movk_i32 %s, 0x%x' % (s(sT3), WS_MOD + 3 * 2048))
        def ubissue():
            self.ld(v(32, 2), 2, 3, sWS, s(sT3), sc1=True, tag='ubw')
            self.ld(v(34, 2), 2, 3, sWS, s(sT3), imm=2048, sc1=True, tag='ubw')
        lg.wait_all()
        k('s_mul_i32 %s, %s, 3072' % (s(sT4), s(sW)))
        def refill(c):
            for oo in (-4, 0):
                k('s_add_u32 m0, %s, %d' % (s(sT4), WQ_BASE + (c % 3) * WQ_CH + oo * 3072))
                k('s_mov_b32 %s, %d' % (s(sT0), (c * 64 + oo * 8) * 3072))
                for mt in range(3): self.dma(12, sWQ, s(sT0), imm=mt * 1024, tag=('wq', c))
        self.barrier()
        refill(3)
        self.barrier()
        refill(4)
        vm.wait(('wq', 3))
        self.barrier()
        refill(5)
        vm.wait(('wq', 4))
        self.barrier()
        refill(6)
        vm.wait(('wq', 5))
        self.barrier()
        refill(7)
        ubissue()
        vm.wait(('wq', 6))
        self.barrier()
        k('v_lshrrev_b32 v10, 3, %s' % v(vL))
        k('v_and_b32 v11, 7, %s' % v(vL))
        k('v_and_b32 v5, 2, v10')
        k('v_xor_b32 v5, v11, v5')
        k('s_and_b32 %s, %s, 1' % (s(sT0), s(sHW)))
        k('s_lshl_b32 %s, %s, 2' % (s(sT0), s(sT0)))
        k('v_xor_b32 v5, %s, v5' % s(sT0))
        k('s_lshl_b32 %s, %s, 3' % (s(sT0), s(sHW)))
        k('v_add_u32 v6, %s, v10' % s(sT0))
        k('v_lshlrev_b32 v6, 10, v6')
        k('v_lshl_add_u32 v6, v5, 4, v6')
        k('s_lshl_b32 %s, %s, 7' % (s(sT1), s(sCS)))
        k('v_add_u32 v140, %s, v6' % s(sT1))
        k('s_lshr_b32 %s, %s, 1' % (s(sT0), s(sHW)))
        k('s_lshl_b32 %s, %s, 3' % (s(sT0), s(sT0)))
        k('v_add_u32 v6, %s, v10' % s(sT0))
        k('s_movk_i32 %s, 3584' % s(sT0))
        k('v_mul_u32_u24 v6, %s, v6' % s(sT0))
        k('v_lshl_add_u32 v6, v5, 4, v6')
        k('s_lshl_b32 %s, %s, 8' % (s(sT1), s(sSLAB)))
        k('v_add_u32 v141, %s, v6' % s(sT1))
        vm.wait(('wq', 7))
        self.barrier()
        self.barrier()
        k('s_lshl_b32 %s, %s, 10' % (s(sT4), s(sHW)))
        for i in range(16):
            k('s_add_u32 m0, %s, %d' % (s(sT4), i * 4096))
            k('s_mov_b32 %s, %d' % (s(sT0), i * 32 * 1024))
            self.dma(140, sWO, s(sT0), tag='wo')
        vm.wait('ubw')
        self.poll(ubissue, [33, 35], 36, preloaded=True)
        self.unpack(36, 37, 32)
        self.unpack(38, 39, 34)
        U, B = 72, 88
        for r in range(2):
            for d in range(8): self.unpack(40 + 2 * d, 41 + 2 * d, 16 + 8 * r + d)
            for e in range(16):
                if r == 0:
                    k('v_mul_f32 %s, v38, %s' % (v(U + e), v(40 + e)))
                    k('v_mul_f32 %s, v36, %s' % (v(B + e), v(40 + e)))
                else:
                    k('v_fmac_f32 %s, v39, %s' % (v(U + e), v(40 + e)))
                    k('v_fmac_f32 %s, v37, %s' % (v(B + e), v(40 + e)))
        self.reduce63(range(U, U + 32))
        k('s_lshl_b32 %s, %s, 7' % (s(sT0), s(sHW)))
        k('s_add_u32 %s, %s, %d' % (s(sT0), s(sT0), L_UBP))
        k('v_mov_b32 v5, %s' % s(sT0))
        k('v_mov_b32 v11, %d' % (L_CNT + 4))
        k('v_mov_b32 v12, 1')
        k('s_mov_b32 exec_lo, 0')
        k('s_mov_b32 exec_hi, 0x80000000')
        for i in range(8): self.dsw('ds_write_b128', 5, v(U + 4 * i, 4), 16 * i)
        lg.wait_all()
        k('ds_add_rtn_u32 v13, v11, v12')
        k('s_waitcnt lgkmcnt(0)')
        k('v_readfirstlane_b32 %s, v13' % s(sT2))
        k('s_mov_b64 exec, -1')
        k('s_cmp_lg_u32 %s, 3' % s(sT2))
        k('s_cbranch_scc1 UB_DONE')
        k('s_cmp_ge_u32 s2, 224')
        k('s_cbranch_scc1 UB_DONE')
        k('v_and_b32 v5, 15, %s' % v(vL))
        k('v_lshlrev_b32 v6, 2, v5')
        k('v_add_u32 v6, %d, v6' % L_UBP)
        for w in range(4):
            self.dsr('ds_read_b32', v(40 + w), 6, 128 * w)
            self.dsr('ds_read_b32', v(44 + w), 6, 128 * w + 64)
        lg.wait_all()
        k('v_add_f32 v40, v40, v41'); k('v_add_f32 v42, v42, v43'); k('v_add_f32 v44, v44, v45'); k('v_add_f32 v46, v46, v47')
        k('v_add_f32 v40, v40, v42'); k('v_add_f32 v42, v44, v46')
        k('v_mov_b32 v41, %s' % s(sTAG)); k('v_mov_b32 v43, %s' % s(sTAG))
        k('v_lshlrev_b32 v6, 4, v5')
        k('s_lshl_b32 %s, s6, 8' % s(sT0))
        k('s_add_u32 %s, %s, 0x%x' % (s(sT0), s(sT0), WS_UB))
        k('s_mov_b64 exec, 0xffff')
        k('buffer_store_dwordx4 v[40:43], v6, %s, %s offen sc1' % (s(sWS, 4), s(sT0)))
        k('s_mov_b64 exec, -1')
        k.label('UB_DONE')
        self.fence()
        k('s_bitcmp1_b32 %s, 0' % s(sHW))
        k('s_cselect_b32 %s, %s, %s' % (s(sGU), s(sWU), s(sWG)))
        k('s_cselect_b32 %s, %s, %s' % (s(sGU + 1), s(sWU + 1), s(sWG + 1)))
        k('s_mov_b32 %s, 0x%x' % (s(sGU + 2), 512 * 3584))
        k('s_mov_b32 %s, 0x20000' % s(sGU + 3))
        vm.wait_all()
        k('s_cmp_eq_u32 %s, 7' % s(sJ))
        k('s_cbranch_scc1 P1_NOG')
        for n in range(5): self.dma_gu(n)
        k.label('P1_NOG')
        vm.load([])

    def tile_addr(self):
        k = self.k
        k('v_lshrrev_b32 v2, 4, %s' % v(vL))
        k('v_and_b32 v3, 15, %s' % v(vL))
    def modslice_addr(self, dst):
        k = self.k
        k('s_lshl_b32 %s, %s, 3' % (s(sT0), s(sCS)))
        k('s_lshl_b32 %s, %s, 2' % (s(sT1), s(sKH)))
        k('s_add_u32 %s, %s, %s' % (s(sT0), s(sT0), s(sT1)))
        k('s_lshr_b32 %s, %s, 5' % (s(sT1), s(sT0)))
        k('s_lshl_b32 %s, %s, 10' % (s(sT1), s(sT1)))
        k('s_and_b32 %s, %s, 31' % (s(sT0), s(sT0)))
        k('s_lshl_b32 %s, %s, 4' % (s(sT0), s(sT0)))
        k('s_add_u32 %s, %s, %s' % (s(sT0), s(sT0), s(sT1)))
        k('v_lshrrev_b32 v10, 1, v2')
        k('v_lshlrev_b32 v10, 4, v10')
        k('v_and_b32 v11, 1, v2')
        k('v_lshl_add_u32 v10, v11, 9, v10')
        k('v_add_u32 %s, %s, v10' % (v(dst), s(sT0)))
    def rowcol_addr(self, dst):
        k = self.k
        k('s_lshl_b32 %s, %s, 4' % (s(sT0), s(sT)))
        k('s_add_u32 %s, %s, %s' % (s(sT0), s(sT0), s(sR0)))
        k('s_lshl_b32 %s, %s, 10' % (s(sT0), s(sT0)))
        k('s_lshl_b32 %s, %s, 7' % (s(sT1), s(sCS)))
        k('s_add_u32 %s, %s, %s' % (s(sT0), s(sT0), s(sT1)))
        k('s_lshl_b32 %s, %s, 6' % (s(sT1), s(sKH)))
        k('s_add_u32 %s, %s, %s' % (s(sT0), s(sT0), s(sT1)))
        k('v_lshlrev_b32 v10, 10, v3')
        k('v_lshl_add_u32 v10, v2, 3, v10')
        k('v_add_u32 %s, %s, v10' % (v(dst), s(sT0)))
    def exchange(self, ACC, RES):
        k = self.k; lg = self.lg
        k('s_lshl_b32 %s, %s, 11' % (s(sT0), s(sW)))
        k('s_add_u32 %s, %s, %d' % (s(sT0), s(sT0), XCH))
        k('v_lshlrev_b32 v10, 4, %s' % v(vL))
        k('v_add_u32 v11, %s, v10' % s(sT0))
        k('v_xor_b32 v12, 0x2000, v11')
        k('s_cmp_eq_u32 %s, 0' % s(sKH))
        k('s_cselect_b64 vcc, -1, 0')
        SND = RES + 8
        for e in range(8):
            k('v_cndmask_b32 %s, %s, %s, vcc' % (v(SND + e), v(ACC + e), v(ACC + 8 + e)))
            k('v_cndmask_b32 %s, %s, %s, vcc' % (v(RES + e), v(ACC + 8 + e), v(ACC + e)))
        self.dsw('ds_write_b128', 11, v(SND, 4), 0)
        self.dsw('ds_write_b128', 11, v(SND + 4, 4), 1024)
        lg.wait_all()
        self.barrier()
        self.dsr('ds_read_b128', v(SND, 4), 12, 0)
        self.dsr('ds_read_b128', v(SND + 4, 4), 12, 1024)
        lg.wait_all()
        for e in range(8): k('v_add_f32 %s, %s, %s' % (v(RES + e), v(RES + e), v(SND + e)))

    def p2(self):
        k = self.k; vm = self.vm; lg = self.lg
        assert (XCH & 0x2000) == 0
        self.tile_addr()
        self.modslice_addr(8)
        self.rowcol_addr(9)
        XR = 120
        GA = 124
        k('v_bfe_u32 v10, %s, 2, 2' % v(vL))
        k('v_bfe_u32 v11, %s, 1, 1' % v(vL))
        k('v_and_b32 v12, 2, v10')
        k('v_xor_b32 v11, v11, v12')
        k('v_and_b32 v12, 1, v2')
        k('v_lshlrev_b32 v12, 2, v12')
        k('v_xor_b32 v11, v11, v12')
        k('v_lshlrev_b32 v1, 10, v2')
        k('v_lshl_add_u32 v1, v10, 7, v1')
        k('v_lshl_add_u32 v1, v11, 4, v1')
        k('v_and_b32 v12, 1, %s' % v(vL))
        k('v_lshl_add_u32 v1, v12, 3, v1')
        k('s_lshl_b32 %s, %s, 15' % (s(sT0), s(sKH)))
        k('v_add_u32 v1, %s, v1' % s(sT0))
        for ct in range(4): k('v_xor_b32 %s, %d, v1' % (v(4 + ct), 32 * ct))
        k('v_lshlrev_b32 v13, 2, v3')
        k('v_lshlrev_b32 v14, 4, %s' % v(vL))
        self.ld(v(XR, 2), 2, 9, sX, '0')
        self.ld(v(XR + 2, 2), 2, 9, sX, '0', imm=32)
        k('s_movk_i32 %s, 0x%x' % (s(sT0), WS_MOD + 2 * 2048))
        k('s_movk_i32 %s, 0x%x' % (s(sT1), WS_MOD + 4 * 2048))
        def issue():
            for a in range(2):
                self.ld(v(GA + 4 * a, 4), 4, 8, sWS, s(sT0), imm=32 * a, sc1=True)
                self.ld(v(GA + 8 + 4 * a, 4), 4, 8, sWS, s(sT1), imm=32 * a, sc1=True)
        self.poll(issue, [GA + 1 + 2 * u for u in range(8)], 15)
        for u in range(8): self.unpack(GA + 2 * u + 1, GA + 2 * u, GA + 2 * u)
        self.barrier()
        k('s_movk_i32 %s, 0x55' % s(sMSK))
        k('s_lshl_b32 %s, %s, 3' % (s(sT0), s(sKH)))
        k('s_add_u32 %s, %s, %s' % (s(sT0), s(sT0), s(sTH)))
        k('s_lshl_b32 %s, %s, %s' % (s(sMSK), s(sMSK), s(sT0)))
        k('s_mov_b32 %s, 0' % s(sMSK + 1))
        self.flag_poll(0, s(sMSK, 2), 13, 15, 16)
        self.stamp(7)
        k('s_lshl_b32 %s, %s, 10' % (s(sT0), s(sR0)))
        k('s_lshl_b32 %s, %s, 14' % (s(sT1), s(sT)))
        k('s_add_u32 %s, %s, %s' % (s(sT0), s(sT0), s(sT1)))
        k('s_lshl_b32 %s, %s, 13' % (s(sT1), s(sKH)))
        k('s_add_u32 %s, %s, %s' % (s(sT0), s(sT0), s(sT1)))
        k('s_add_u32 %s, %s, 0x%x' % (s(sT0), s(sT0), WS_O))
        k('s_add_u32 %s, %s, 4096' % (s(sT1), s(sT0)))
        for sx in range(8):
            self.ld(a_(4 * sx, 4), 4, 14, sWS, s(sT0 if sx < 4 else sT1), imm=(sx & 3) * 1024, sc1=True, tag=('o', sx))
        ACC = 16
        NB = 8; LA = 4
        seq = [(sx, ct) for sx in range(8) for ct in range(4)]
        def rd(i):
            sx, ct = seq[i]
            b = 32 + 4 * (i % NB)
            self.dsr('ds_read_b64_tr_b16', a_(b, 2), 4 + ct, sx * 4096, tag=('f', i))
            self.dsr('ds_read_b64_tr_b16', a_(b + 2, 2), 4 + ct, sx * 4096 + 512, tag=('f', i))
        for i in range(LA): rd(i)
        for i, (sx, ct) in enumerate(seq):
            if ct == 0: vm.wait(('o', sx))
            lg.wait(('f', i))
            k('v_mfma_f32_16x16x32_bf16 %s, %s, %s, %s' % (v(ACC + 4 * ct, 4), a_(32 + 4 * (i % NB), 4), a_(4 * sx, 4), '0' if sx == 0 else v(ACC + 4 * ct, 4)))
            if i + LA < len(seq): rd(i + LA)
        RES = 32
        self.exchange(ACC, RES)
        XF = 48
        for d in range(4): self.unpack(XF + 2 * d, XF + 2 * d + 1, XR + d)
        for e in range(8): k('v_fma_f32 %s, %s, %s, %s' % (v(RES + e), v(RES + e), v(GA + (e ^ 1)), v(XF + e)))
        for d in range(4): k('v_cvt_pk_bf16_f32 %s, %s, %s' % (v(vX1 + d), v(RES + 2 * d), v(RES + 2 * d + 1)))
        for d in range(4): self.unpack(XF + 2 * d, XF + 2 * d + 1, vX1 + d)
        for e in range(8): k('v_mul_f32 %s, %s, %s' % (v(RES + e), v(XF + e), v(GA + 8 + (e ^ 1))))
        for d in range(4): k('v_cvt_pk_bf16_f32 %s, %s, %s' % (v(RES + 8 + d), v(RES + 2 * d), v(RES + 2 * d + 1)))
        k('v_lshlrev_b32 v10, 9, v2')
        k('v_lshl_add_u32 v10, v3, 4, v10')
        k('s_lshr_b32 %s, %s, 5' % (s(sT0), s(sR0)))
        k('s_lshr_b32 %s, %s, 1' % (s(sT1), s(sT)))
        k('s_add_u32 %s, %s, %s' % (s(sT0), s(sT0), s(sT1)))
        k('s_lshl_b32 %s, %s, 1' % (s(sT1), s(sCS)))
        k('s_add_u32 %s, %s, %s' % (s(sT1), s(sT1), s(sKH)))
        k('s_and_b32 %s, %s, 1' % (s(sT2), s(sT)))
        k('s_lshl_b32 %s, %s, 15' % (s(sT3), s(sT0)))
        k('s_lshl_b32 %s, %s, 11' % (s(sT5), s(sT1)))
        k('s_add_u32 %s, %s, %s' % (s(sT3), s(sT3), s(sT5)))
        k('s_lshl_b32 %s, %s, 8' % (s(sT5), s(sT2)))
        k('s_add_u32 %s, %s, %s' % (s(sT3), s(sT3), s(sT5)))
        k('s_add_u32 %s, %s, 0x%x' % (s(sT3), s(sT3), WS_Y))
        self.st(v(RES + 8, 4), 4, 10, sWS, s(sT3), sc1=True)
        k('v_mov_b32 v13, 0x3f803f80')
        k('v_dot2_f32_bf16 v56, %s, v13, 0' % v(vX1))
        k('v_dot2_f32_bf16 v57, %s, %s, 0' % (v(vX1), v(vX1)))
        for d in range(1, 4):
            k('v_dot2_f32_bf16 v56, %s, v13, v56' % v(vX1 + d))
            k('v_dot2_f32_bf16 v57, %s, %s, v57' % (v(vX1 + d), v(vX1 + d)))
        self.xlane_multi([56, 57], [58, 59], 'v_add_f32')
        k('s_lshl_b32 %s, %s, 12' % (s(sT3), s(sT0)))
        k('s_lshl_b32 %s, %s, 8' % (s(sT5), s(sT1)))
        k('s_add_u32 %s, %s, %s' % (s(sT3), s(sT3), s(sT5)))
        k('s_lshl_b32 %s, %s, 7' % (s(sT5), s(sT2)))
        k('s_add_u32 %s, %s, %s' % (s(sT3), s(sT3), s(sT5)))
        k('s_add_u32 %s, %s, 0x%x' % (s(sT3), s(sT3), WS_STATS))
        k('v_lshlrev_b32 v10, 3, v3')
        k('s_mov_b64 exec, 0xffff')
        self.st(v(56, 2), 2, 10, sWS, s(sT3), sc1=True)
        k('s_mov_b64 exec, -1')
        vm.wait_all()
        self.barrier()
        k('s_cmp_lg_u32 %s, 0' % s(sW))
        k('s_cbranch_scc1 P2_NOFLAG')
        self.flag_store(1, 11, 12)
        k.label('P2_NOFLAG')
        vm.load([])
        self.stamp(8)

    def wd_addr(self, widx_s):
        k = self.k
        k('v_lshrrev_b32 v10, 3, %s' % v(vL))
        k('v_and_b32 v11, 7, %s' % v(vL))
        k('v_and_b32 v12, 6, v10')
        k('v_xor_b32 v11, v11, v12')
        k('s_lshl_b32 %s, %s, 3' % (s(sT0), s(widx_s)))
        k('v_add_u32 v12, %s, v10' % s(sT0))
        k('v_lshlrev_b32 v12, 10, v12')
        k('v_lshl_add_u32 v12, v11, 4, v12')
        k('s_lshl_b32 %s, %s, 7' % (s(sT1), s(sCS)))
        k('v_add_u32 v142, %s, v12' % s(sT1))
        k('s_lshl_b32 %s, %s, 10' % (s(sT4), s(widx_s)))

    def p3(self):
        k = self.k; vm = self.vm; lg = self.lg
        k('s_cmp_eq_u32 %s, 7' % s(sJ))
        k('s_cbranch_scc1 P3_IDLE')
        k('s_cmp_ge_u32 %s, 4' % s(sW))
        k('s_cbranch_scc1 P3_HELP')
        self.p3_compute()
        k('s_branch P3_DONE')
        k.label('P3_HELP')
        self.fence()
        vm.load([]); lg.load([])
        self.p3_helper()
        k('s_branch P3_DONE')
        k.label('P3_IDLE')
        self.fence()
        vm.load([]); lg.load([])
        self.wd_addr(sW)
        for d in range(7): self.dma_d(d, 8)
        vm.wait_all()
        self.barrier()
        k.label('P3_DONE')
        self.fence()
        vm.load([]); lg.load([])

    def p3_compute(self):
        k = self.k; vm = self.vm; lg = self.lg
        k('s_setprio 2')
        YR = lambda sg: a_(4 * sg, 4) if sg < 24 else v(112 + 4 * (sg - 24), 4)
        ACC = 16; FB = 80; NB = 8; LA = 4
        k('v_lshrrev_b32 v2, 5, %s' % v(vL))
        k('v_and_b32 v3, 31, %s' % v(vL))
        k('v_bfe_u32 v8, %s, 4, 1' % v(vL))
        k('v_bfe_u32 v10, %s, 2, 2' % v(vL))
        k('v_bfe_u32 v11, %s, 1, 1' % v(vL))
        k('v_and_b32 v12, 2, v10')
        k('v_xor_b32 v11, v11, v12')
        k('v_lshlrev_b32 v12, 2, v8')
        k('v_xor_b32 v11, v11, v12')
        k('v_lshlrev_b32 v1, 10, v8')
        k('v_lshl_add_u32 v1, v10, 7, v1')
        k('v_lshl_add_u32 v1, v2, 9, v1')
        k('v_lshl_add_u32 v1, v11, 4, v1')
        k('v_and_b32 v12, 1, %s' % v(vL))
        k('v_lshl_add_u32 v1, v12, 3, v1')
        for ft in range(4):
            k('v_xor_b32 %s, %d, v1' % (v(4 + ft), 32 * ft))
            k('v_add_u32 %s, 0x10000, %s' % (v(144 + ft), v(4 + ft)))
            k('v_add_u32 %s, 0x20000, %s' % (v(148 + ft), v(4 + ft)))
        AB = lambda reg, ft: (4, 144, 148)[reg] + ft
        k('v_and_b32 v13, 15, %s' % v(vL))
        k('v_lshlrev_b32 v13, 2, v13')
        k('v_lshlrev_b32 v14, 4, %s' % v(vL))
        k('v_lshlrev_b32 v12, 11, v2')
        k('v_lshl_add_u32 v12, v3, 3, v12')
        k('s_lshr_b32 %s, %s, 1' % (s(sT0), s(sW)))
        k('s_movk_i32 %s, 0x5555' % s(sMSK))
        k('s_lshl_b32 %s, %s, %s' % (s(sMSK), s(sMSK), s(sT0)))
        k('s_mov_b32 %s, 0' % s(sMSK + 1))
        self.flag_poll(1, s(sMSK, 2), 13, 15, 16)
        self.stamp(9)
        k('s_lshl_b32 %s, %s, 2' % (s(sT2), s(sG)))
        k('s_add_u32 %s, %s, %s' % (s(sT2), s(sT2), s(sW)))
        k('s_lshl_b32 %s, %s, 12' % (s(sT1), s(sT2)))
        k('s_add_u32 %s, %s, 0x%x' % (s(sT1), s(sT1), WS_STATS))
        SB = ACC
        for i in range(8): self.ld(v(SB + 2 * i, 2), 2, 12, sWS, s(sT1), imm=256 * i, sc1=True, tag='st')
        k('s_lshl_b32 %s, %s, 15' % (s(sT0), s(sT2)))
        k('s_add_u32 %s, %s, 0x%x' % (s(sT0), s(sT0), WS_Y))
        for sg in range(32):
            self.ld(YR(sg), 4, 14, sWS, s(sT0), imm=(sg & 3) * 1024, sc1=True, tag=('y', sg))
            if sg & 3 == 3: k('s_add_u32 %s, %s, 4096' % (s(sT0), s(sT0)))
        k('v_lshrrev_b32 v10, 4, v3')
        k('s_mov_b32 %s, 57344' % s(sT0))
        k('v_mul_u32_u24 v9, %s, v10' % s(sT0))
        k('v_lshl_add_u32 v9, v2, 8, v9')
        k('v_and_b32 v10, 15, v3')
        k('v_lshl_add_u32 v9, v10, 4, v9')
        k('s_mul_i32 %s, %s, %d' % (s(sT3), s(sT2), 2 * 57344))
        k('s_lshl_b32 %s, %s, 12' % (s(sT1), s(sSLAB)))
        k('s_add_u32 %s, %s, %s' % (s(sT3), s(sT3), s(sT1)))
        k('s_add_u32 %s, %s, 0x%x' % (s(sT3), s(sT3), WS_HH))
        k('v_lshlrev_b32 v8, 4, v2')
        k('v_add_u32 v8, %d, v8' % L_UBT)
        RSTD, NMR = 152, 153
        vm.wait('st')
        for st in (4, 2, 1):
            for i in range(st):
                k('v_add_f32 %s, %s, %s' % (v(SB + 2 * i), v(SB + 2 * i), v(SB + 2 * (i + st))))
                k('v_add_f32 %s, %s, %s' % (v(SB + 2 * i + 1), v(SB + 2 * i + 1), v(SB + 2 * (i + st) + 1)))
        self.xlane_multi([SB, SB + 1], [SB + 2, SB + 3], 'v_add_f32', steps=(32,))
        k('v_mul_f32 %s, %s, %s' % (v(SB), f32hex(1.0 / 512), v(SB)))
        k('v_mul_f32 %s, %s, %s' % (v(SB + 1), f32hex(1.0 / 512), v(SB + 1)))
        k('v_fma_f32 %s, -%s, %s, %s' % (v(SB + 1), v(SB), v(SB), v(SB + 1)))
        k('v_max_f32 %s, 0, %s' % (v(SB + 1), v(SB + 1)))
        k('v_add_f32 %s, %s, %s' % (v(SB + 1), f32hex(1e-5), v(SB + 1)))
        k('v_rsq_f32 %s, %s' % (v(RSTD), v(SB + 1)))
        k('v_mul_f32 %s, -%s, %s' % (v(NMR), v(SB), v(RSTD)))
        for U in range(2):
            seq = [(c, ks, ft) for c in range(8) for ks in range(4) for ft in range(4)]
            def rd(i):
                c, ks, ft = seq[i]
                n = 8 * U + c
                if ks == 0 and ft == 0:
                    self.barrier()
                base = self.item_slot(n) * SLOT + (4 * (ks >> 1) + (ks & 1)) * 2048
                reg = base >> 16; off = base & 0xffff
                b = FB + 4 * (i % NB)
                self.dsr('ds_read_b64_tr_b16', v(b, 2), AB(reg, ft), off, tag=('f', i))
                self.dsr('ds_read_b64_tr_b16', v(b + 2, 2), AB(reg, ft), off + 4096, tag=('f', i))
            for i in range(LA): rd(i)
            for i, (c, ks, ft) in enumerate(seq):
                sg = 4 * c + ks
                if U == 0 and ft == 0: vm.wait(('y', sg))
                if U == 1 and i == 48:
                    vm.wait_all()
                lg.wait(('f', i))
                k('v_mfma_f32_32x32x16_bf16 %s, %s, %s, %s' % (v(ACC + 16 * ft, 16), v(FB + 4 * (i % NB), 4), YR(sg), '0' if sg == 0 else v(ACC + 16 * ft, 16)))
                if i + LA < len(seq): rd(i + LA)
            for ft in range(4):
                A = ACC + 16 * ft
                for rq in range(4):
                    off = (rq >> 1) * 512 + (64 * U + 16 * ft + 8 * (rq & 1)) * 4
                    self.dsr('ds_read_b128', v(FB + 4 * rq, 4), 8, off, tag=('u', rq))
                    self.dsr('ds_read_b128', v(FB + 16 + 4 * rq, 4), 8, off + 1024, tag=('u', rq))
                for rq in range(4):
                    lg.wait(('u', rq))
                    for r in range(4 * rq, 4 * rq + 4):
                        k('v_fma_f32 %s, %s, %s, %s' % (v(FB + r), v(NMR), v(FB + r), v(FB + 16 + r)))
                    for r in range(4 * rq, 4 * rq + 4):
                        k('v_fma_f32 %s, %s, %s, %s' % (v(A + r), v(RSTD), v(A + r), v(FB + r)))
                for r in range(8): k('v_max_f32 %s, 0, %s' % (v(A + r), v(A + r)))
                for r in range(8): k('v_mul_f32 %s, %s, %s' % (v(A + r), v(A + r), v(A + 8 + r)))
                for d in range(4): k('v_cvt_pk_bf16_f32 %s, %s, %s' % (v(A + 8 + d), v(A + 2 * d), v(A + 2 * d + 1)))
                self.st(v(A + 8, 4), 4, 9, sWS, s(sT3), imm=(2 * U + (ft >> 1)) * 1024 + (ft & 1) * 512, sc1=True)
        vm.wait_all()
        self.barrier()
        k('s_setprio 0')
        self.stamp(10)

    def p3_helper(self):
        k = self.k; vm = self.vm; lg = self.lg
        k('s_lshl_b32 %s, %s, 10' % (s(sT4), s(sHW)))
        for n in range(5, 9): self.dma_gu(n)
        self.barrier()
        k('v_subrev_u32 v1, 256, v0')
        k('v_lshrrev_b32 v2, 7, v1')
        k('v_and_b32 v3, 127, v1')
        k('s_movk_i32 %s, 1792' % s(sT0))
        k('v_mul_u32_u24 v2, %s, v2' % s(sT0))
        k('v_add_u32 v2, v2, v3')
        k('v_lshlrev_b32 v2, 4, v2')
        k('s_lshl_b32 %s, %s, 11' % (s(sT1), s(sSLAB)))
        k('s_add_u32 %s, %s, 0x%x' % (s(sT1), s(sT1), WS_UB))
        self.poll(lambda: self.ld(v(16, 4), 4, 2, sWS, s(sT1), sc1=True), [17, 19], 20)
        k('v_lshlrev_b32 v3, 2, v1')
        k('v_add_u32 v3, %d, v3' % L_UBT)
        self.dsw('ds_write_b32', 3, v(16), 0)
        self.dsw('ds_write_b32', 3, v(18), 1024)
        lg.wait_all()
        self.wd_addr(sHW)
        for c in range(1, 17):
            vm.wait(('it', c))
            if c == 16: vm.wait_all()
            self.barrier()
            if c == 12 or c == 16:
                k('s_cmp_lg_u32 %s, 4' % s(sW))
                L = k.newlabel('NOFL')
                k('s_cbranch_scc1 %s' % L)
                q = vm.save()
                self.flag_store(2 if c == 12 else 3, 11, 12)
                vm.load(q)
                k.label(L)
            if 2 <= c <= 15:
                n = c - 2 + 9
                if n < 16: self.dma_gu(n)
                else: self.dma_d(n - 16, 4)

    def p4(self):
        k = self.k; vm = self.vm; lg = self.lg
        self.wd_addr(sW)
        self.dma_d(7, 8); self.dma_d(8, 8)
        self.tile_addr()
        self.modslice_addr(8)
        self.rowcol_addr(9)
        GB = 124
        k('v_bfe_u32 v10, %s, 2, 3' % v(vL))
        k('v_bfe_u32 v11, %s, 1, 1' % v(vL))
        k('v_and_b32 v12, 6, v10')
        k('v_xor_b32 v11, v11, v12')
        k('v_lshrrev_b32 v12, 5, %s' % v(vL))
        k('v_lshlrev_b32 v1, 11, v12')
        k('v_lshl_add_u32 v1, v10, 7, v1')
        k('v_lshl_add_u32 v1, v11, 4, v1')
        k('v_and_b32 v12, 1, %s' % v(vL))
        k('v_lshl_add_u32 v1, v12, 3, v1')
        k('s_lshl_b32 %s, %s, 13' % (s(sT0), s(sKH)))
        k('v_add_u32 v1, %s, v1' % s(sT0))
        for ct in range(4):
            k('v_xor_b32 %s, %d, v1' % (v(4 + ct), 32 * ct))
            k('v_add_u32 %s, 0x10000, %s' % (v(144 + ct), v(4 + ct)))
            k('v_add_u32 %s, 0x20000, %s' % (v(148 + ct), v(4 + ct)))
        AB = lambda reg, ct: (4, 144, 148)[reg] + ct
        k('v_lshlrev_b32 v13, 2, v3')
        k('v_lshlrev_b32 v14, 4, %s' % v(vL))
        ev = sum(1 << m for m in (0, 2, 4, 6, 9, 11, 13)); od = sum(1 << m for m in (1, 3, 5, 8, 10, 12, 14))
        k('s_cmp_eq_u32 %s, 0' % s(sKH))
        k('s_cselect_b32 %s, 0x%x, 0' % (s(sMSK), ev ^ od))
        k('s_xor_b32 %s, %s, 0x%x' % (s(sMSK), s(sMSK), od))
        k('s_mov_b32 %s, 0' % s(sMSK + 1))
        k('s_lshr_b32 %s, %s, 4' % (s(sT2), s(sR0)))
        k('s_add_u32 %s, %s, %s' % (s(sT2), s(sT2), s(sT)))
        k('s_mul_i32 %s, %s, 57344' % (s(sT2), s(sT2)))
        k('s_lshl_b32 %s, %s, 12' % (s(sT1), s(sKH)))
        k('s_add_u32 %s, %s, %s' % (s(sT2), s(sT2), s(sT1)))
        k('s_add_u32 %s, %s, 0x%x' % (s(sT2), s(sT2), WS_HH))
        HR = lambda d, u: (a_(8 * d + 4 * u, 4) if d < 7 else v(48 + 8 * (d - 7) + 4 * u, 4))
        def hh_loads(half):
            k('s_mov_b32 %s, %s' % (s(sT1), s(sT2)))
            for i in range(7):
                for u in range(2):
                    self.ld(HR(7 * half + i, u), 4, 14, sWS, s(sT1), imm=half * 2048 + u * 1024, sc1=True, tag=('h', 7 * half + i))
                if i < 6: k('s_add_u32 %s, %s, 8192' % (s(sT1), s(sT1)))
        self.flag_poll(2, s(sMSK, 2), 13, 15, 16)
        hh_loads(0)
        ACC = 16; NB = 8; LA = 4
        seq = [(d, u, ct) for d in range(14) for u in range(2) for ct in range(4)]
        def rd(i):
            d, u, ct = seq[i]
            if u == 0 and ct == 0:
                if d in (4, 7, 9, 12):
                    if d == 9: vm.wait(('it', 16 + 11))
                    if d == 12: vm.wait(('it', 16 + 13))
                    self.barrier()
                    if d == 4:
                        for dd in (9, 10, 11): self.dma_d(dd, 8)
                    if d == 7:
                        for dd in (12, 13): self.dma_d(dd, 8)
            base = self.item_slot(16 + d) * SLOT + u * 4096
            reg = base >> 16; off = base & 0xffff
            b = 64 + 4 * (i % NB)
            self.dsr('ds_read_b64_tr_b16', a_(b, 2), AB(reg, ct), off, tag=('f', i))
            self.dsr('ds_read_b64_tr_b16', a_(b + 2, 2), AB(reg, ct), off + 1024, tag=('f', i))
        for i in range(LA): rd(i)
        for i, (d, u, ct) in enumerate(seq):
            if d == 3 and u == 0 and ct == 0:
                self.flag_poll(3, s(sMSK, 2), 13, 15, 12)
                hh_loads(1)
                k('s_movk_i32 %s, 0x%x' % (s(sT1), WS_MOD + 5 * 2048))
                for a in range(2): self.ld(v(GB + 4 * a, 4), 4, 8, sWS, s(sT1), imm=32 * a, sc1=True, tag='gb')
            if u == 0 and ct == 0: vm.wait(('h', d))
            lg.wait(('f', i))
            k('v_mfma_f32_16x16x32_bf16 %s, %s, %s, %s' % (v(ACC + 4 * ct, 4), a_(64 + 4 * (i % NB), 4), HR(d, u), '0' if i < 4 else v(ACC + 4 * ct, 4)))
            if i + LA < len(seq): rd(i + LA)
        RES = 32
        self.exchange(ACC, RES)
        k('s_movk_i32 %s, 0x%x' % (s(sT1), WS_MOD + 5 * 2048))
        vm.wait_all()
        k('v_xor_b32 v15, %s, %s' % (s(sTAG), v(GB + 1)))
        for u in range(1, 4):
            k('v_xor_b32 v16, %s, %s' % (s(sTAG), v(GB + 1 + 2 * u)))
            k('v_or_b32 v15, v15, v16')
        k('v_cmp_ne_u32 vcc, 0, v15')
        k('s_cbranch_vccz GB_OK')
        def issue():
            for a in range(2): self.ld(v(GB + 4 * a, 4), 4, 8, sWS, s(sT1), imm=32 * a, sc1=True)
        self.poll(issue, [GB + 1 + 2 * u for u in range(4)], 15)
        k.label('GB_OK')
        for u in range(4): self.unpack(GB + 2 * u + 1, GB + 2 * u, GB + 2 * u)
        XF = 48
        for d in range(4): self.unpack(XF + 2 * d, XF + 2 * d + 1, vX1 + d)
        for e in range(8): k('v_fma_f32 %s, %s, %s, %s' % (v(RES + e), v(RES + e), v(GB + (e ^ 1)), v(XF + e)))
        for d in range(4): k('v_cvt_pk_bf16_f32 %s, %s, %s' % (v(RES + 8 + d), v(RES + 2 * d), v(RES + 2 * d + 1)))
        self.st(v(RES + 8, 2), 2, 9, sOUT, '0')
        self.st(v(RES + 10, 2), 2, 9, sOUT, '0', imm=32)
        self.stamp(11)

    def fin(self):
        k = self.k; vm = self.vm
        k.label('FIN')
        self.fence()
        if self.stop < 99: k('s_waitcnt vmcnt(0) lgkmcnt(0)')
        k('s_cmp_lg_u32 s2, 0')
        k('s_cbranch_scc1 NOEP')
        k('s_cmp_lg_u32 %s, 7' % s(sW))
        k('s_cbranch_scc1 NOEP')
        k('v_lshlrev_b32 v14, 4, %s' % v(vL))
        k('s_movk_i32 %s, 0x%x' % (s(sT0), WS_MOD))
        k('s_movk_i32 %s, 0x%x' % (s(sT1), WS_MOD + 4096))
        k('s_movk_i32 %s, 0x%x' % (s(sT2), WS_MOD + 8192))
        def issue():
            for i in range(12): self.ld(v(16 + 4 * i, 4), 4, 14, sWS, s(sT0 + i // 4), imm=(i & 3) * 1024, sc1=True)
        self.poll(issue, [17 + 2 * u for u in range(24)], 15)
        k('s_add_u32 %s, %s, 15' % (s(sT0), s(sTAG)))
        k('v_mov_b32 v15, %s' % s(sT0))
        k('v_mov_b32 v14, 0')
        k('s_mov_b64 exec, 1')
        self.st(v(15), 1, 14, sWS, '0', imm=WS_EPOCH, sc1=True)
        k('s_mov_b64 exec, -1')
        k.label('NOEP')
        if self.stamps:
            k('s_waitcnt lgkmcnt(0)')
            for i in range(24): k('v_writelane_b32 v16, %s, %d' % (s(STAMP0 + i), i))
            k('s_memrealtime s[8:9]')
            k('s_memtime s[10:11]')
            k('s_getreg_b32 s12, hwreg(HW_REG_XCC_ID)')
            k('s_waitcnt lgkmcnt(0)')
            for i in range(5): k('v_writelane_b32 v16, %s, %d' % (s(8 + i), 24 + i))
            k('s_lshl_b32 %s, s2, 3' % s(sT0))
            k('s_add_u32 %s, %s, %s' % (s(sT0), s(sT0), s(sW)))
            k('s_lshl_b32 %s, %s, 7' % (s(sT0), s(sT0)))
            k('s_add_u32 %s, %s, 0x%x' % (s(sT0), s(sT0), WS_STAMP))
            k('v_lshlrev_b32 v14, 2, %s' % v(vL))
            k('s_mov_b32 exec_hi, 0')
            self.st(v(16), 1, 14, sWS, s(sT0))
        k.label('END')

    def gen(self):
        self.p0()
        phases = [self.p1, self.p2, self.p3, self.p4]
        for i, ph in enumerate(phases):
            if self.stop <= i: break
            ph()
        self.fin()
        return self.k

if __name__ == '__main__':
    ap = argparse.ArgumentParser()
    ap.add_argument('-o', default='full.s')
    ap.add_argument('--stop', type=int, default=99)
    ap.add_argument('--stamps', action='store_true')
    ap.add_argument('--map', default='A')
    a = ap.parse_args()
    g = Gen(stop=a.stop, stamps=a.stamps, mapping=a.map)
    k = g.gen()
    hdr = open('cdna_kernels/%s.s.ref' % NAME).read().split('; Override launch')[0]
    out = build([k], header=hdr)
    out = out.replace('; @launch kernel=%s_kernel ' % NAME, '; @launch ')
    open(a.o, 'w').write(out)
    print('wrote', a.o, len(out), 'bytes', len(k.lines), 'lines')
```

```python
import sys, struct, argparse
from asmgen import *

NAME = 'adaLN_cond__sliding_local_dilated__glu_gated_reglu__prompt'
WS_EPOCH = 0x0
WS_FLAG = 0x1000
WS_MOD = 0x8000
WS_UB = 0x10000
WS_STATS = 0x20000
WS_O = 0x100000
WS_Y = 0x300000
WS_HH = 0x500000
HH_TB = 112 * 1024
WS_STAMP = 0xD00000
WS_END = 0xE00000
LOG2E = 1.4426950408889634
NEG = -1.0e30
LDS_TOTAL = 163840
H_HALF = 40960
WQ_CH = 24576
WQ_POS = [40960, 81920, 106496, 131072, 81920, 106496, 131072, 81920]
SLOT = 16384
WO1 = 98304
XCH = 131072
T_EA = 147456
T_EB = T_EA + 4096
T_R2 = T_EB + 2048
T_ZERO = T_R2 + 512
MISC = 155648
L_SC = MISC
L_PK = MISC + 4096
L_MODP = L_PK
SPIN = 3000

def f32hex(x):
    return '0x%08x' % struct.unpack('<I', struct.pack('<f', x))[0]
def v(a, n=1): return 'v%d' % a if n == 1 else 'v[%d:%d]' % (a, a + n - 1)
def a_(a, n=1): return 'a%d' % a if n == 1 else 'a[%d:%d]' % (a, a + n - 1)
def s(a, n=1): return 's%d' % a if n == 1 else 's[%d:%d]' % (a, a + n - 1)

class Ctr:
    def __init__(self, k, name, mx):
        self.k = k; self.name = name; self.mx = mx; self.q = []
    def issue(self, tag='x'): self.q.append(tag)
    def wait(self, tag):
        idx = max([i for i, t in enumerate(self.q) if t == tag], default=-1)
        if idx < 0: return
        n = len(self.q) - 1 - idx
        if n > self.mx:
            n = self.mx; idx = len(self.q) - 1 - n
        self.k('s_waitcnt %s(%d)' % (self.name, n))
        self.q = self.q[idx + 1:]
    def wait_all(self, force=False):
        if self.q or force: self.k('s_waitcnt %s(0)' % self.name)
        self.q = []
    def save(self): return list(self.q)
    def load(self, q): self.q = list(q)

sW = 3
sX, sWQ, sWO, sWG, sWU, sWD, sC, sWM, sOUT, sWS = [32 + 4 * i for i in range(10)]
sGU = 56
sG, sM, sTH, sCS, sR0, sTAG, sSLAB, sJ = range(72, 80)
sT0, sT1, sT2, sT3, sT4, sT5 = range(80, 86)
sSP = 86
sKH, sT2H = 87, 88
sW4 = 89
sMSK = 92
sHB = 94
sFL = 95
STAMP0 = 8
vL = 15

class Gen:
    def __init__(self, stop=99, stamps=None, mapping='B', opt=None):
        self.stop = stop; self.stamps = stamps; self.mapping = mapping
        self.opt = opt or {}
        self.k = Kern(NAME + '_kernel', 256, 512, lds=LDS_TOTAL, vgpr=256, sgpr=102, accum=160)
        self.vm = Ctr(self.k, 'vmcnt', 63); self.lg = Ctr(self.k, 'lgkmcnt', 15)
        self.bars = None

    def stamp(self, name):
        name = str(name)
        if self.stamps and name in self.stamps:
            i = self.stamps.index(name)
            assert i < 12
            self.k('s_memtime %s' % s(STAMP0 + 2 * i, 2))
    def fence(self):
        self.k('s_nop 7'); self.k('s_nop 7')
    def unpack(self, dlo, dhi, src):
        k = self.k
        k('v_lshlrev_b32 %s, 16, %s' % (v(dlo), v(src)))
        k('v_and_b32 %s, 0xffff0000, %s' % (v(dhi), v(src)))
    def rnd(self, dst, src):
        k = self.k
        k('v_cvt_pk_bf16_f32 %s, %s, %s' % (v(dst), v(src), v(src)))
        k('v_and_b32 %s, 0xffff0000, %s' % (v(dst), v(dst)))
    def ld(self, dst, n, va, srd, soff, imm=0, sc1=False, tag='x'):
        op = {1: 'dword', 2: 'dwordx2', 4: 'dwordx4'}[n]
        self.k('buffer_load_%s %s, %s, %s, %s offen%s%s' % (op, dst, v(va), s(srd, 4), soff, ' offset:%d' % imm if imm else '', ' sc1' if sc1 else ''))
        self.vm.issue(tag)
    def st(self, src, n, va, srd, soff, imm=0, sc1=False, tag='st'):
        op = {1: 'dword', 2: 'dwordx2', 4: 'dwordx4'}[n]
        self.k('buffer_store_%s %s, %s, %s, %s offen%s%s' % (op, src, v(va), s(srd, 4), soff, ' offset:%d' % imm if imm else '', ' sc1' if sc1 else ''))
        self.vm.issue(tag)
    def dma(self, va, srd, soff, imm=0, tag='dma'):
        self.k('buffer_load_dwordx4 %s, %s, %s offen%s lds' % (v(va), s(srd, 4), soff, ' offset:%d' % imm if imm else ''))
        self.vm.issue(tag)
    def dsr(self, op, dst, va, off=0, tag='x'):
        self.k('%s %s, %s%s' % (op, dst, v(va), ' offset:%d' % off if off else ''))
        self.lg.issue(tag)
    def dsw(self, op, va, src, off=0, tag='w'):
        self.k('%s %s, %s%s' % (op, v(va), src, ' offset:%d' % off if off else ''))
        self.lg.issue(tag)
    def barrier(self, name):
        self.stamp('a' + name)
        self.k('s_barrier')
        self.bars.append(name)
    def xlane_multi(self, rs, ts, op, steps=(16, 32)):
        k = self.k
        for st in steps:
            for r, t in zip(rs, ts): k('v_mov_b32 %s, %s' % (v(t), v(r)))
            for r, t in zip(rs, ts): k('v_permlane%d_swap_b32 %s, %s' % (st, v(r), v(t)))
            for r, t in zip(rs, ts): k('%s %s, %s, %s' % (op, v(r), v(r), v(t)))
    def allreduce16(self, regs, op='v_add_f32'):
        for mod in ('quad_perm:[1,0,3,2]', 'quad_perm:[2,3,0,1]', 'row_half_mirror', 'row_mirror'):
            for r in regs:
                self.k('%s_dpp %s, %s, %s %s row_mask:0xf bank_mask:0xf' % (op, v(r), v(r), v(r), mod))
    def reduce63(self, regs):
        for mod, rm in (('row_shr:1', 0xf), ('row_shr:2', 0xf), ('row_shr:4', 0xf), ('row_shr:8', 0xf), ('row_bcast:15', 0xa), ('row_bcast:31', 0xc)):
            for r in regs:
                self.k('v_add_f32_dpp %s, %s, %s %s row_mask:0x%x bank_mask:0xf' % (v(r), v(r), v(r), mod, rm))
    def poll(self, issue, tagregs, tmp, tagoff=0, mask=None, sleep=0, preloaded=False):
        k = self.k
        L = k.newlabel('POLL'); D = k.newlabel('PDONE')
        k('s_add_u32 %s, %s, %d' % (s(sT5), s(sTAG), tagoff))
        k('s_movk_i32 %s, %d' % (s(sSP), SPIN))
        if preloaded:
            C = k.newlabel('PCHK'); q = self.vm.save()
            k('s_branch %s' % C)
        k.label(L)
        issue()
        self.vm.wait_all()
        if preloaded:
            k.label(C); self.vm.load(q)
        first = True
        for i in range(0, len(tagregs)):
            if first:
                k('v_xor_b32 %s, %s, %s' % (v(tmp), s(sT5), v(tagregs[i]))); first = False
            else:
                k('v_xor_b32 %s, %s, %s' % (v(tagregs[i]), s(sT5), v(tagregs[i])))
        rest = tagregs[1:]
        while rest:
            if len(rest) >= 2:
                k('v_or3_b32 %s, %s, %s, %s' % (v(tmp), v(tmp), v(rest[0]), v(rest[1]))); rest = rest[2:]
            else:
                k('v_or_b32 %s, %s, %s' % (v(tmp), v(tmp), v(rest[0]))); rest = rest[1:]
        k('v_cmp_ne_u32 vcc, 0, %s' % v(tmp))
        if mask is not None:
            k('s_and_b64 vcc, vcc, %s' % mask)
        k('s_cbranch_vccz %s' % D)
        if sleep: k('s_sleep %d' % sleep)
        k('s_sub_u32 %s, %s, 1' % (s(sSP), s(sSP)))
        k('s_cmp_lg_u32 %s, 0' % s(sSP))
        k('s_cbranch_scc1 %s' % L)
        k.label(D)
    def flag_store(self, phase, tmpa, tmpd):
        k = self.k
        ops = []
        ops.append(lambda: k('s_add_u32 %s, %s, %d' % (s(sT1), s(sTAG), 1 + phase)))
        ops.append(lambda: k('v_mov_b32 %s, %d' % (v(tmpa), phase * 4096)))
        ops.append(lambda: k('v_mov_b32 %s, %s' % (v(tmpd), s(sT1))))
        def fin():
            k('s_mov_b64 exec, 1')
            self.st(v(tmpd), 1, tmpa, sWS, s(sFL), sc1=True, tag='flag')
            k('s_mov_b64 exec, -1')
        ops.append(fin)
        return ops
    def flag_poll(self, phase, va, vd, tmp, sleep=0):
        k = self.k
        k('s_lshl_b32 %s, %s, 8' % (s(sT0), s(sG)))
        k('s_add_u32 %s, %s, 0x%x' % (s(sT0), s(sT0), WS_FLAG + phase * 4096))
        self.poll(lambda: self.ld(v(vd), 1, va, sWS, s(sT0), sc1=True), [vd], tmp, tagoff=1 + phase, mask=s(sMSK, 2), sleep=sleep)

    def p0(self):
        k = self.k; vm = self.vm; lg = self.lg
        if self.stamps:
            k('s_memtime s[96:97]'); k('s_memrealtime s[98:99]')
        k('s_cmp_ge_u32 s2, 256')
        k('s_cbranch_scc1 END')
        k('s_load_dwordx16 s[8:23], s[0:1], 0')
        k('s_load_dwordx8 s[24:31], s[0:1], 64')
        k('v_and_b32 %s, 63, v0' % v(vL))
        k('v_lshrrev_b32 v1, 6, v0')
        k('v_readfirstlane_b32 %s, v1' % s(sW))
        k('s_and_b32 s4, s2, 7')
        k('s_lshr_b32 s5, s2, 3')
        if self.mapping == 'A':
            k('s_lshr_b32 s6, s5, 4')
            k('s_lshl_b32 %s, s4, 1' % s(sG))
            k('s_add_u32 %s, %s, s6' % (s(sG), s(sG)))
            k('s_and_b32 %s, s5, 15' % s(sM))
        else:
            k('s_lshr_b32 s6, s4, 1')
            k('s_lshl_b32 s6, s6, 2')
            k('s_lshr_b32 s7, s5, 3')
            k('s_add_u32 %s, s6, s7' % s(sG))
            k('s_and_b32 s6, s4, 1')
            k('s_lshl_b32 s6, s6, 3')
            k('s_and_b32 s7, s5, 7')
            k('s_add_u32 %s, s6, s7' % s(sM))
        k('s_and_b32 %s, %s, 7' % (s(sJ), s(sM)))
        k('s_lshr_b32 s6, %s, 3' % s(sM))
        k('s_and_b32 %s, %s, 1' % (s(sTH), s(sJ)))
        k('s_lshr_b32 s7, %s, 1' % s(sJ))
        k('s_lshl_b32 %s, s6, 2' % s(sCS))
        k('s_add_u32 %s, %s, s7' % (s(sCS), s(sCS)))
        k('s_mul_i32 %s, s6, 7' % s(sSLAB))
        k('s_add_u32 %s, %s, %s' % (s(sSLAB), s(sSLAB), s(sJ)))
        k('s_lshl_b32 %s, %s, 7' % (s(sR0), s(sG)))
        k('s_lshl_b32 s7, %s, 6' % s(sTH))
        k('s_add_u32 %s, %s, s7' % (s(sR0), s(sR0)))
        k('s_and_b32 %s, %s, 3' % (s(sW4), s(sW)))
        k('s_lshr_b32 %s, %s, 1' % (s(sKH), s(sW4)))
        k('s_and_b32 %s, %s, 1' % (s(sT2H), s(sW)))
        k('s_lshl_b32 s6, %s, 8' % s(sG))
        k('s_lshl_b32 s7, %s, 4' % s(sM))
        k('s_add_u32 s6, s6, s7')
        k('s_lshl_b32 s7, %s, 2' % s(sW4))
        k('s_add_u32 s6, s6, s7')
        k('s_add_u32 %s, s6, 0x%x' % (s(sFL), WS_FLAG))
        k('s_lshl_b32 %s, s4, 8' % s(sT0))
        k('s_lshl_b32 %s, s5, 4' % s(sT1))
        k('s_add_u32 %s, %s, %s' % (s(sT0), s(sT0), s(sT1)))
        k('s_lshl_b32 %s, s4, 9' % s(sT1))
        k('s_lshl_b32 %s, s5, 5' % s(sT2))
        k('s_add_u32 %s, %s, %s' % (s(sT1), s(sT1), s(sT2)))
        k('s_add_u32 %s, %s, %d' % (s(sT1), s(sT1), 2048 - 512))
        k('s_cmp_lt_u32 s2, 128')
        k('s_cselect_b32 %s, %s, %s' % (s(sT2), s(sT0), s(sT1)))
        k('v_lshlrev_b32 v2, 1, v0')
        k('s_movk_i32 s6, 6144')
        k('v_mul_u32_u24 v3, s6, v0')
        k('v_lshrrev_b32 v4, 5, %s' % v(vL))
        k('v_lshl_add_u32 v4, v1, 1, v4')
        k('v_and_b32 v5, 31, %s' % v(vL))
        k('v_add_u32 v6, %s, v4' % s(sR0))
        k('v_subrev_u32 v7, 16, v6')
        k('v_max_i32 v7, 0, v7')
        k('v_lshlrev_b32 v6, 10, v6')
        k('v_lshlrev_b32 v7, 10, v7')
        k('v_lshl_add_u32 v6, v5, 4, v6')
        k('v_lshl_add_u32 v7, v5, 4, v7')
        k('v_xor_b32 v8, v5, v4')
        k('v_lshlrev_b32 v8, 4, v8')
        k('v_lshl_add_u32 v8, v4, 9, v8')
        k('v_add_u32 v9, %d, v8' % H_HALF)
        k('v_lshrrev_b32 v10, 3, %s' % v(vL))
        k('v_and_b32 v11, 7, %s' % v(vL))
        k('v_and_b32 v12, 2, v10')
        k('v_xor_b32 v11, v11, v12')
        k('v_and_b32 v12, 1, v1')
        k('v_lshlrev_b32 v12, 2, v12')
        k('v_xor_b32 v11, v11, v12')
        k('v_and_b32 v12, 3, v1')
        k('v_lshl_add_u32 v12, v12, 3, v10')
        k('s_movk_i32 s6, 3072')
        k('v_mul_u32_u24 v12, s6, v12')
        k('v_lshl_add_u32 v12, v11, 4, v12')
        k('s_lshl_b32 s7, %s, 7' % s(sCS))
        k('v_add_u32 v12, s7, v12')
        k('v_mov_b32 v13, 0')
        k('v_lshlrev_b32 v14, 4, %s' % v(vL))
        k('s_waitcnt lgkmcnt(0)')
        k.srd(sC, 22, 1024)
        k.srd(sWM, 24, 512 * 6144)
        self.k('buffer_load_ushort v16, v2, %s, 0 offen' % s(sC, 4)); vm.issue('c')
        self.ld(v(20, 4), 4, 3, sWM, s(sT2), tag='wm')
        self.ld(v(24, 4), 4, 3, sWM, s(sT2), imm=16, tag='wm2')
        k.srd(sWS, 30, WS_END)
        self.ld(v(19), 1, 13, sWS, '0', imm=WS_EPOCH, sc1=True, tag='ep')
        k.srd(sX, 8, 2048 * 1024)
        self.barrier('Bw')
        for p in range(5):
            if p >= 2: k('s_mov_b32 %s, %d' % (s(sT0), (p - 1) * 16384))
            for i in range(2):
                self.ld(v(112 + 8 * p + 4 * i, 4), 4, 7 if p == 0 else 6, sX, '0' if p < 2 else s(sT0), imm=512 * i, tag='x%d' % p)
        k.srd(sWQ, 10, 512 * 3072)
        k.srd(sWO, 12, 512 * 1024)
        k.srd(sWG, 16, 512 * 3584)
        k.srd(sWU, 18, 512 * 3584)
        k.srd(sWD, 20, 1792 * 1024)
        k.srd(sOUT, 26, 2048 * 1024)
        self.stamp(0)
        vm.wait('c')
        k('v_lshlrev_b32 v16, 16, v16')
        k('v_mul_f32 v17, %s, v16' % f32hex(-LOG2E))
        k('v_exp_f32 v17, v17')
        k('v_add_f32 v17, 1.0, v17')
        k('v_rcp_f32 v17, v17')
        k('v_mul_f32 v16, v16, v17')
        self.rnd(16, 16)
        k('v_mov_b32 v18, %d' % L_MODP)
        k('v_lshl_add_u32 v18, v1, 6, v18')
        def proc8(src, dst, off):
            for d in range(4): self.unpack(dst + 2 * d, dst + 2 * d + 1, src + d)
            for e in range(8): k('v_mul_f32 %s, v16, %s' % (v(dst + e), v(dst + e)))
            self.reduce63(range(dst, dst + 8))
            k('s_mov_b32 exec_lo, 0')
            k('s_mov_b32 exec_hi, 0x80000000')
            self.dsw('ds_write_b128', 18, v(dst, 4), off)
            self.dsw('ds_write_b128', 18, v(dst + 4, 4), off + 16)
            k('s_mov_b64 exec, -1')
        vm.wait('wm')
        proc8(20, 32, 0)
        k('s_cmp_lt_u32 s2, 128')
        k('s_cbranch_scc1 MOD8')
        q = vm.save()
        vm.wait('wm2')
        proc8(24, 40, 32)
        vm.load(q)
        k.label('MOD8')
        lg.wait_all()
        self.barrier('Bm')
        vm.wait('ep')
        k('v_readfirstlane_b32 %s, v19' % s(sTAG))
        k('s_add_u32 %s, %s, 1' % (s(sTAG), s(sTAG)))
        k('s_cmp_lg_u32 %s, 7' % s(sW))
        k('s_cbranch_scc1 MODPUB_DONE')
        k('v_and_b32 v17, 3, %s' % v(vL))
        k('v_lshlrev_b32 v18, 4, v17')
        k('v_add_u32 v18, %d, v18' % L_MODP)
        for w in range(8): self.dsr('ds_read_b128', v(32 + 4 * w, 4), 18, 64 * w)
        k('s_lshr_b32 %s, %s, 3' % (s(sT0), s(sT2)))
        k('v_add_u32 v19, %s, v17' % s(sT0))
        k('v_and_b32 v20, 1, v19')
        k('v_lshrrev_b32 v21, 1, v19')
        k('v_and_b32 v22, 31, v21')
        k('v_lshrrev_b32 v21, 5, v21')
        k('v_lshlrev_b32 v21, 10, v21')
        k('v_lshl_add_u32 v21, v20, 9, v21')
        k('v_lshl_add_u32 v21, v22, 4, v21')
        k('s_lshr_b32 %s, %s, 10' % (s(sT0), s(sT2)))
        k('s_cmp_eq_u32 %s, 1' % s(sT0))
        k('s_cselect_b32 %s, 1.0, 0' % s(sT1))
        k('s_cmp_eq_u32 %s, 4' % s(sT0))
        k('s_cselect_b32 %s, 1.0, %s' % (s(sT1), s(sT1)))
        k('s_mov_b32 %s, 0x%x' % (s(sT0), WS_MOD))
        lg.wait_all()
        for st in (4, 2, 1):
            for w in range(st):
                for e in range(4): k('v_add_f32 %s, %s, %s' % (v(32 + 4 * w + e), v(32 + 4 * w + e), v(32 + 4 * (w + st) + e)))
        for e in range(4): self.rnd(32 + e, 32 + e)
        for e in range(4): k('v_add_f32 %s, %s, %s' % (v(32 + e), s(sT1), v(32 + e)))
        k('v_cvt_pk_bf16_f32 v36, v32, v33')
        k('v_mov_b32 v37, %s' % s(sTAG))
        k('v_cvt_pk_bf16_f32 v38, v34, v35')
        k('v_mov_b32 v39, %s' % s(sTAG))
        k('s_cmp_lt_u32 s2, 128')
        k('s_cselect_b32 exec_lo, 3, 15')
        k('s_mov_b32 exec_hi, 0')
        k('buffer_store_dwordx4 v[36:39], v21, %s, %s offen sc1' % (s(sWS, 4), s(sT0)))
        k('s_mov_b64 exec, -1')
        k.label('MODPUB_DONE')
        self.fence()
        self.stamp(1)
        self.NPRE = self.opt.get('wpre', 2)

    def wq_dma(self):
        k = self.k
        k('s_mul_i32 %s, %s, 3072' % (s(sT1), s(sW4)))
        for c in range(4):
            for oo in (0, 4):
                k('s_add_u32 m0, %s, %d' % (s(sT1), WQ_POS[c] + oo * 3072))
                k('s_mov_b32 %s, %d' % (s(sT0), (c * 64 + oo * 8) * 3072))
                for mt in range(3): self.dma(12, sWQ, s(sT0), imm=mt * 1024, tag='wq')

    def ln(self):
        k = self.k; vm = self.vm; lg = self.lg
        XH = lambda p, i, e: (16 if i == 0 else 72) + 8 * p + e
        ones = 'v13'
        k('v_mov_b32 v13, 0x3f803f80')
        SUM, SQ = 56, 61
        for p in range(5):
            vm.wait('x%d' % p)
            for d in range(8):
                r = 112 + 8 * p + d
                if d == 0:
                    k('v_dot2_f32_bf16 %s, %s, %s, 0' % (v(SUM + p), v(r), ones))
                    k('v_dot2_f32_bf16 %s, %s, %s, 0' % (v(SQ + p), v(r), v(r)))
                else:
                    k('v_dot2_f32_bf16 %s, %s, %s, %s' % (v(SUM + p), v(r), ones, v(SUM + p)))
                    k('v_dot2_f32_bf16 %s, %s, %s, %s' % (v(SQ + p), v(r), v(r), v(SQ + p)))
            for i in range(2):
                for d in range(4):
                    self.unpack(XH(p, i, 2 * d), XH(p, i, 2 * d + 1), 112 + 8 * p + 4 * i + d)
        regs = list(range(SUM, SUM + 10))
        self.allreduce16(regs)
        self.xlane_multi(regs, list(range(112, 122)), 'v_add_f32', steps=(16,))
        for p in range(5):
            k('v_mul_f32 %s, %s, %s' % (v(SUM + p), f32hex(1.0 / 512), v(SUM + p)))
            k('v_mul_f32 %s, %s, %s' % (v(SQ + p), f32hex(1.0 / 512), v(SQ + p)))
        for p in range(5):
            k('v_fma_f32 %s, -%s, %s, %s' % (v(SQ + p), v(SUM + p), v(SUM + p), v(SQ + p)))
        for p in range(5):
            k('v_max_f32 %s, 0, %s' % (v(SQ + p), v(SQ + p)))
        for p in range(5):
            k('v_add_f32 %s, %s, %s' % (v(SQ + p), f32hex(1e-5), v(SQ + p)))
        for p in range(5):
            k('v_rsq_f32 %s, %s' % (v(SQ + p), v(SQ + p)))
        for p in range(5):
            k('v_mul_f32 %s, -%s, %s' % (v(SUM + p), v(SUM + p), v(SQ + p)))
        for p in range(5):
            for i in range(2):
                for e in range(8):
                    k('v_fma_f32 %s, %s, %s, %s' % (v(XH(p, i, e)), v(XH(p, i, e)), v(SQ + p), v(SUM + p)))
        k('v_lshlrev_b32 v13, 4, v5')
        k('v_add_u32 v13, %d, v13' % L_SC)
        self.stamp(2)
        self.XH = XH; self.MB = (56, 112)

    def wq_stage(self, c):
        k = self.k
        for oi, oo in enumerate((0, 4)):
            k('s_mov_b32 %s, %d' % (s(sT0), (c * 64 + oo * 8) * 3072))
            for mt in range(3):
                self.ld(a_(24 * (c - 4) + 12 * oi + 4 * mt, 4), 4, 12, sWQ, s(sT0), imm=mt * 1024, tag=('wq', c))
    def sc_read(self, i):
        for vec in range(2):
            for q in range(2):
                self.dsr('ds_read_b128', v(self.MB[i] + 8 * vec + 4 * q, 4), 13, vec * 2048 + i * 1024 + q * 512, tag=('sc', i))
    def hrow(self, p, i):
        k = self.k; XH = self.XH; MB = self.MB
        M = lambda vec, e: MB[i] + 8 * vec + e
        ops = []
        for e in range(8):
            ops.append(lambda e=e: k('v_fma_f32 %s, %s, %s, %s' % (v(XH(p, i, e)), v(XH(p, i, e)), v(M(1, e)), v(M(0, e)))))
        for d in range(4):
            ops.append(lambda d=d: k('v_cvt_pk_bf16_f32 %s, %s, %s' % (v(XH(p, i, d)), v(XH(p, i, 2 * d)), v(XH(p, i, 2 * d + 1)))))
        ops.append(lambda: self.dsw('ds_write_b128', 8 + i, v(XH(p, i, 0), 4), p * 8192, tag='hw'))
        return ops
    def h0(self):
        self.barrier('Bs')
        self.sc_read(0); self.sc_read(1)
        self.lg.wait(('sc', 0))
        for p in range(5):
            for op in self.hrow(p, 0): op()
        self.lg.wait_all()

    def trfrag_base29(self, dst):
        k = self.k
        k('v_bfe_u32 v10, %s, 2, 2' % v(vL))
        k('v_bfe_u32 v11, %s, 1, 1' % v(vL))
        k('v_bfe_u32 v12, %s, 4, 1' % v(vL))
        k('v_lshl_add_u32 v11, v12, 1, v11')
        k('v_bfe_u32 v12, %s, 3, 1' % v(vL))
        k('v_lshl_add_u32 v11, v12, 2, v11')
        k('v_lshrrev_b32 v12, 5, %s' % v(vL))
        k('v_lshlrev_b32 %s, 9, v12' % v(dst))
        k('v_lshl_add_u32 %s, v10, 7, %s' % (v(dst), v(dst)))
        k('v_lshl_add_u32 %s, v11, 4, %s' % (v(dst), v(dst)))
        k('v_and_b32 v12, 1, %s' % v(vL))
        k('v_lshl_add_u32 %s, v12, 3, %s' % (v(dst), v(dst)))
    def rowcol_addr(self, dst):
        k = self.k
        k('s_lshl_b32 %s, %s, 5' % (s(sT0), s(sT2H)))
        k('s_add_u32 %s, %s, %s' % (s(sT0), s(sT0), s(sR0)))
        k('s_lshl_b32 %s, %s, 10' % (s(sT0), s(sT0)))
        k('s_lshl_b32 %s, %s, 7' % (s(sT1), s(sCS)))
        k('s_add_u32 %s, %s, %s' % (s(sT0), s(sT0), s(sT1)))
        k('s_lshl_b32 %s, %s, 6' % (s(sT1), s(sKH)))
        k('s_add_u32 %s, %s, %s' % (s(sT0), s(sT0), s(sT1)))
        k('v_and_b32 v10, 31, %s' % v(vL))
        k('v_lshlrev_b32 v10, 10, v10')
        k('v_lshrrev_b32 v11, 5, %s' % v(vL))
        k('v_lshl_add_u32 v10, v11, 4, v10')
        k('v_add_u32 %s, %s, v10' % (v(dst), s(sT0)))
    def pk_addr(self, dst):
        k = self.k
        k('s_lshl_b32 %s, %s, 7' % (s(sT0), s(sCS)))
        k('s_lshl_b32 %s, %s, 6' % (s(sT1), s(sKH)))
        k('s_add_u32 %s, %s, %s' % (s(sT0), s(sT0), s(sT1)))
        k('s_add_u32 %s, %s, %d' % (s(sT0), s(sT0), L_PK))
        k('v_lshrrev_b32 v11, 5, %s' % v(vL))
        k('v_lshlrev_b32 v11, 3, v11')
        k('v_add_u32 %s, %s, v11' % (v(dst), s(sT0)))

    def c_p1(self):
        k = self.k; vm = self.vm; lg = self.lg
        self.wq_dma()
        self.ln()
        k('v_lshrrev_b32 v2, 4, %s' % v(vL))
        k('v_bfe_u32 v3, %s, 2, 2' % v(vL))
        k('v_bfe_u32 v4, %s, 1, 1' % v(vL))
        k('s_lshl_b32 %s, %s, 1' % (s(sT0), s(sW)))
        k('v_add_u32 v4, %s, v4' % s(sT0))
        k('v_and_b32 v5, 2, v3')
        k('v_xor_b32 v4, v4, v5')
        k('v_and_b32 v5, 1, v2')
        k('v_lshlrev_b32 v5, 2, v5')
        k('v_xor_b32 v4, v4, v5')
        k('v_mul_u32_u24 v1, 3072, v2')
        k('v_lshl_add_u32 v1, v3, 7, v1')
        k('v_lshl_add_u32 v1, v4, 4, v1')
        k('v_and_b32 v5, 1, %s' % v(vL))
        k('v_lshl_add_u32 v1, v5, 3, v1')
        k('v_add_u32 v14, 106496, v1')
        k('v_add_u32 v1, 40960, v1')
        k('v_and_b32 v3, 15, %s' % v(vL))
        for j in range(4):
            k('v_add_u32 v10, %d, v2' % (4 * j))
            k('v_xor_b32 v10, v10, v3')
            k('v_lshlrev_b32 v10, 4, v10')
            k('v_lshl_add_u32 %s, v3, 9, v10' % v(4 + j))
        vm.wait_all(force=True)
        self.h0()
        self.barrier('B1')
        self.stamp(4)
        k('s_setprio 2')
        aK = lambda t: 16 + 4 * t
        aV = lambda t: 36 + 4 * t
        aQ = lambda t: 56 + 4 * (t - 1)
        def FR(buf, f): return 32 * buf + 4 * f
        def reads(sx):
            buf = sx & 1; c = sx >> 1; u = sx & 1
            pos = WQ_POS[c] + u * 12288
            breg, wo = (1, pos - 40960) if pos < 106496 else (14, pos - 106496)
            L = []
            def wr(mt):
                L.append(lambda: self.dsr('ds_read_b64_tr_b16', a_(FR(buf, mt), 2), breg, wo + mt * 1024, tag=('f', sx, mt)))
                L.append(lambda: self.dsr('ds_read_b64_tr_b16', a_(FR(buf, mt) + 2, 2), breg, wo + mt * 1024 + 512, tag=('f', sx, mt)))
            def hr(t):
                L.append(lambda: self.dsr('ds_read_b128', a_(FR(buf, 3 + t), 4), 4 + (sx & 3), t * 8192 + ((sx & 7) >> 2) * 256, tag=('f', sx, 3 + t)))
            wr(1); hr(0); wr(2); hr(1); wr(0); hr(2); hr(3); hr(4)
            return L
        def mfmas(sx):
            buf = sx & 1
            L = []
            for t in range(5):
                L.append((aK(t), FR(buf, 1), FR(buf, 3 + t), (1, 3 + t)))
                L.append((aV(t), FR(buf, 3 + t), FR(buf, 2), (2, 3 + t)))
                if t: L.append((aQ(t), FR(buf, 0), FR(buf, 3 + t), (0, 3 + t)))
            return L
        extra = []
        for p in range(5): extra += self.hrow(p, 1)
        for r in reads(0): r()
        for sx in range(16):
            if sx & 1:
                lg.wait_all()
                self.barrier('E%d' % (sx >> 1))
            if sx == 7:
                assert not extra
                for j in range(4): k('v_add_u32 %s, %d, %s' % (v(4 + j), H_HALF, v(4 + j)))
            nxt = reads(sx + 1) if sx < 15 else []
            for i, (acc, A, B, deps) in enumerate(mfmas(sx)):
                for d in deps: lg.wait(('f', sx, d))
                k('v_mfma_f32_16x16x32_bf16 %s, %s, %s, %s' % (v(acc, 4), a_(A, 4), a_(B, 4), '0' if sx == 0 else v(acc, 4)))
                if nxt: nxt.pop(0)()
                if extra and sx >= 1: extra.pop(0)()
            assert not nxt
        self.stamp(5)
        self.rowcol_addr(9)
        XR = 144
        self.ld(v(XR, 4), 4, 9, sX, '0', tag='xr')
        self.ld(v(XR + 4, 4), 4, 9, sX, '0', imm=32, tag='xr')
        BP, BC, BP1 = 72, 76, 80
        ONES = 84
        k('v_lshlrev_b32 v10, 2, v2')
        k('v_sub_u32 v10, v3, v10')
        k('v_mov_b32 v11, %s' % f32hex(NEG))
        for r in range(4):
            k('v_subrev_u32 v12, %d, v10' % r)
            k('v_and_b32 v13, 0x80000001, v12')
            k('v_cmp_eq_u32 vcc, 0, v13')
            k('v_cndmask_b32 %s, v11, 0, vcc' % v(BC + r))
            k('v_cmp_eq_u32 vcc, 0x80000000, v13')
            k('v_cndmask_b32 %s, v11, 0, vcc' % v(BP + r))
        k('s_cmp_eq_u32 %s, 0' % s(sR0))
        k('s_cselect_b64 vcc, -1, 0')
        for r in range(4):
            k('v_cndmask_b32 %s, %s, v11, vcc' % (v(BP1 + r), v(BP + r)))
            k('v_mov_b32 %s, 0x3f803f80' % v(ONES + r))
        KP, VP, QP = 88, 98, 108
        for t in range(5):
            for d in range(2):
                k('v_cvt_pk_bf16_f32 %s, %s, %s' % (v(KP + 2 * t + d), v(aK(t) + 2 * d), v(aK(t) + 2 * d + 1)))
            if t:
                for d in range(2):
                    k('v_cvt_pk_bf16_f32 %s, %s, %s' % (v(QP + 2 * (t - 1) + d), v(aQ(t) + 2 * d), v(aQ(t) + 2 * d + 1)))
        for t in range(5):
            for d in range(2):
                k('v_cvt_pk_bf16_f32 %s, %s, %s' % (v(VP + 2 * t + d), v(aV(t) + 2 * d), v(aV(t) + 2 * d + 1)))
        S = lambda t: 16 + 8 * (t - 1)
        for t in range(1, 5):
            k('v_mfma_f32_16x16x16_bf16 %s, %s, %s, %s' % (v(S(t), 4), v(KP + 2 * (t - 1), 2), v(QP + 2 * (t - 1), 2), v(BP1 if t == 1 else BP, 4)))
            k('v_mfma_f32_16x16x16_bf16 %s, %s, %s, %s' % (v(S(t) + 4, 4), v(KP + 2 * t, 2), v(QP + 2 * (t - 1), 2), v(BC, 4)))
        k('v_and_b32 v11, 1, v2')
        k('v_lshlrev_b32 v10, 9, v11')
        k('v_lshrrev_b32 v11, 1, v2')
        k('v_lshl_add_u32 v10, v11, 8, v10')
        k('v_lshl_add_u32 v10, v3, 4, v10')
        k('s_lshl_b32 %s, %s, 10' % (s(sT0), s(sR0)))
        k('s_lshl_b32 %s, %s, 2' % (s(sT1), s(sCS)))
        k('s_add_u32 %s, %s, %s' % (s(sT1), s(sT1), s(sW)))
        k('s_lshl_b32 %s, %s, 10' % (s(sT1), s(sT1)))
        k('s_add_u32 %s, %s, %s' % (s(sT0), s(sT0), s(sT1)))
        k('s_add_u32 %s, %s, 0x%x' % (s(sT0), s(sT0), WS_O))
        k('s_add_u32 %s, %s, 32768' % (s(sT3), s(sT0)))
        k('s_mov_b32 %s, %s' % (s(sT2), f32hex(0.25 * LOG2E)))
        MX = 48; TM = 52
        T4 = range(1, 5)
        for t in T4: k('v_max3_f32 %s, %s, %s, %s' % (v(MX + t - 1), v(S(t)), v(S(t) + 1), v(S(t) + 2)))
        for t in T4: k('v_max3_f32 %s, %s, %s, %s' % (v(MX + t - 1), v(MX + t - 1), v(S(t) + 3), v(S(t) + 4)))
        for t in T4: k('v_max3_f32 %s, %s, %s, %s' % (v(MX + t - 1), v(MX + t - 1), v(S(t) + 5), v(S(t) + 6)))
        for t in T4: k('v_max_f32 %s, %s, %s' % (v(MX + t - 1), v(MX + t - 1), v(S(t) + 7)))
        self.xlane_multi(list(range(MX, MX + 4)), list(range(TM, TM + 4)), 'v_max_f32')
        for t in T4: k('v_mul_f32 %s, %s, %s' % (v(MX + t - 1), s(sT2), v(MX + t - 1)))
        for t in T4:
            for e in range(8): k('v_fma_f32 %s, %s, %s, -%s' % (v(S(t) + e), v(S(t) + e), s(sT2), v(MX + t - 1)))
        PP = 116
        for t in T4:
            for e in range(8): k('v_exp_f32 %s, %s' % (v(S(t) + e), v(S(t) + e)))
            if t > 1:
                for d in range(4): k('v_cvt_pk_bf16_f32 %s, %s, %s' % (v(PP + 4 * (t - 2) + d), v(S(t - 1) + 2 * d), v(S(t - 1) + 2 * d + 1)))
        for d in range(4): k('v_cvt_pk_bf16_f32 %s, %s, %s' % (v(PP + 12 + d), v(S(4) + 2 * d), v(S(4) + 2 * d + 1)))
        for t in T4:
            k('v_mfma_f32_16x16x32_bf16 %s, %s, %s, 0' % (v(S(t) + 4, 4), v(ONES, 4), v(PP + 4 * (t - 1), 4)))
            k('v_mfma_f32_16x16x32_bf16 %s, %s, %s, 0' % (v(S(t), 4), v(VP + 2 * (t - 1), 4), v(PP + 4 * (t - 1), 4)))
        for t in T4: k('v_rcp_f32 %s, %s' % (v(MX + t - 1), v(S(t) + 4)))
        OP = 56
        for pr in range(2):
            for h in range(2):
                t = 2 * pr + 1 + h
                for r in range(4): k('v_mul_f32 %s, %s, %s' % (v(S(t) + r), v(S(t) + r), v(MX + t - 1)))
                k('v_cvt_pk_bf16_f32 %s, %s, %s' % (v(OP + 4 * pr + 2 * h), v(S(t)), v(S(t) + 1)))
                k('v_cvt_pk_bf16_f32 %s, %s, %s' % (v(OP + 4 * pr + 2 * h + 1), v(S(t) + 2), v(S(t) + 3)))
            for d in range(2): k('v_permlane32_swap_b32 %s, %s' % (v(OP + 4 * pr + d), v(OP + 4 * pr + 2 + d)))
            self.st(v(OP + 4 * pr, 4), 4, 10, sWS, s(sT0 if pr == 0 else sT3), sc1=True)
        self.stamp(6)
        fl = self.flag_store(0, 11, 12)
        for op in fl[:-1]: op()
        self.c_p2_setup()
        vm.wait_all()
        fl[-1]()
        self.stamp('6b')

    def c_p2_setup(self):
        k = self.k
        k('v_bfe_u32 v6, %s, 2, 2' % v(vL))
        k('v_bfe_u32 v7, %s, 1, 1' % v(vL))
        k('v_bfe_u32 v8, %s, 4, 1' % v(vL))
        k('v_lshl_add_u32 v7, v8, 1, v7')
        k('v_bfe_u32 v8, %s, 3, 1' % v(vL))
        k('v_lshl_add_u32 v7, v8, 2, v7')
        k('v_lshrrev_b32 v8, 5, %s' % v(vL))
        k('v_lshlrev_b32 v1, 9, v8')
        k('v_lshl_add_u32 v1, v6, 7, v1')
        k('v_lshl_add_u32 v1, v7, 4, v1')
        k('v_and_b32 v8, 1, %s' % v(vL))
        k('v_lshl_add_u32 v1, v8, 3, v1')
        k('s_lshl_b32 %s, %s, 6' % (s(sT0), s(sKH)))
        k('v_xor_b32 v1, %s, v1' % s(sT0))
        k('s_mul_i32 %s, %s, %d' % (s(sT0), s(sKH), WO1))
        k('v_add_u32 v4, %s, v1' % s(sT0))
        k('v_xor_b32 v5, 64, v4')
        k('v_lshlrev_b32 v13, 2, %s' % v(vL))
        k('v_lshlrev_b32 v14, 4, %s' % v(vL))
        k('s_lshl_b32 %s, %s, 2' % (s(sT0), s(sTH)))
        k('s_lshl_b32 %s, 0x0f0f0f0f, %s' % (s(sT2), s(sT0)))
        k('s_cmp_eq_u32 %s, 0' % s(sKH))
        k('s_cselect_b32 %s, %s, 0' % (s(sMSK), s(sT2)))
        k('s_cselect_b32 %s, 0, %s' % (s(sMSK + 1), s(sT2)))
        k('s_lshr_b32 %s, %s, 5' % (s(sT3), s(sR0)))
        k('s_add_u32 %s, %s, %s' % (s(sT3), s(sT3), s(sT2H)))
        k('s_lshl_b32 %s, %s, 15' % (s(sT4), s(sT3)))
        k('s_lshl_b32 %s, %s, 14' % (s(sT2), s(sKH)))
        k('s_add_u32 %s, %s, %s' % (s(sT4), s(sT4), s(sT2)))
        k('s_add_u32 %s, %s, 0x%x' % (s(sT4), s(sT4), WS_O))

    def exchange_write(self, SND):
        return [lambda i=i: self.dsw('ds_write_b128', 6, v(SND + 4 * i, 4), 1024 * i, tag='xw') for i in range(4)]
    def exchange_addr(self):
        k = self.k
        k('s_lshl_b32 %s, %s, 12' % (s(sT0), s(sW4)))
        k('s_add_u32 %s, %s, %d' % (s(sT0), s(sT0), XCH))
        k('v_add_u32 v6, %s, v14' % s(sT0))
        k('v_xor_b32 v7, 0x2000, v6')
    def exchange_finish(self, KEEP, SND, name):
        k = self.k; lg = self.lg
        lg.wait_all()
        self.barrier(name)
        for i in range(4): self.dsr('ds_read_b128', v(SND + 4 * i, 4), 7, 1024 * i, tag=('xr', i))
        for i in range(4):
            lg.wait(('xr', i))
            for e in range(4 * i, 4 * i + 4): k('v_add_f32 %s, %s, %s' % (v(KEEP + e), v(KEEP + e), v(SND + e)))

    def gemm_tile(self, nks, frag_addr, breg, pre, fillers=None, hook=None, FB=None):
        k = self.k; lg = self.lg
        KEEP, SND = 16, 32
        ops = []
        for ks in range(nks):
            ops.append((ks - 0.5 - 3.0 * ks / (nks - 1), ks, 1)); ops.append((ks, ks, 0))
        ops.sort()
        NB = 6; LA = 4
        seen_r = set(); seen_m = set(); started = set()
        def rd(i):
            _, ks, tile = ops[i]
            if ks not in seen_r:
                seen_r.add(ks)
                if hook: hook(ks, i - LA)
            reg, off = frag_addr(ks, tile)
            b = FB(i % NB)
            self.dsr('ds_read_b64_tr_b16', b[0], reg, off, tag=('f', i))
            self.dsr('ds_read_b64_tr_b16', b[1], reg, off + 1024, tag=('f', i))
        for i in range(LA): rd(i)
        fill = list(fillers or [])
        last_snd = max(i for i, o in enumerate(ops) if o[2] == 1)
        xw = []
        for i, (_, ks, tile) in enumerate(ops):
            if ks not in seen_m:
                seen_m.add(ks); pre(ks)
            lg.wait(('f', i))
            acc = SND if tile else KEEP
            k('v_mfma_f32_32x32x16_bf16 %s, %s, %s, %s' % (v(acc, 16), FB(i % NB)[2], breg(ks), v(acc, 16) if tile in started else '0'))
            started.add(tile)
            if i + LA < len(ops): rd(i + LA)
            for _ in range(3):
                if fill: fill.pop(0)()
            if i == last_snd + 2: xw = self.exchange_write(SND)
            for _ in range(2):
                if xw: xw.pop(0)()
        for op in fill: op()
        if last_snd + 2 >= len(ops): xw = self.exchange_write(SND)
        for op in xw: op()
        self.ops_last = ops

    def c_p2(self):
        k = self.k; vm = self.vm; lg = self.lg
        self.flag_poll(0, 13, 10, 11)
        self.stamp(7)
        for sx in range(16):
            self.ld(a_(4 * sx, 4), 4, 14, sWS, s(sT4), imm=(sx & 3) * 1024, sc1=True, tag=('o', sx))
            if sx & 3 == 3 and sx < 15: k('s_add_u32 %s, %s, 4096' % (s(sT4), s(sT4)))
        self.barrier('B2')
        self.pk_addr(8)
        self.exchange_addr()
        XR = 144; GA = 48; C1 = 64; PK = 80
        for q in range(4):
            self.dsr('ds_read_b64', v(PK + 2 * q, 2), 8, 16 * q, tag='pk')
            self.dsr('ds_read_b64', v(PK + 8 + 2 * q, 2), 8, 2048 + 16 * q, tag='pk')
        lg.wait('pk')
        for d in range(8):
            self.unpack(GA + 2 * d, GA + 2 * d + 1, PK + d)
            self.unpack(C1 + 2 * d, C1 + 2 * d + 1, PK + 8 + d)
        XF = 96
        for j in range(2):
            for d in range(2): k('v_permlane32_swap_b32 %s, %s' % (v(XR + 4 * j + d), v(XR + 4 * j + 2 + d)))
        for d in range(8): self.unpack(XF + 2 * d, XF + 2 * d + 1, XR + d)
        FB = lambda b: (a_(64 + 4 * b, 2), a_(66 + 4 * b, 2), a_(64 + 4 * b, 4))
        self.gemm_tile(16, lambda ks, tile: (4 + tile, ks * 2048), lambda ks: a_(4 * ks, 4), lambda ks: vm.wait(('o', ks)), FB=FB)
        self.stamp('p2m')
        KEEP, SND = 16, 32
        k('s_lshl_b32 %s, %s, 1' % (s(sT1), s(sCS)))
        k('s_add_u32 %s, %s, %s' % (s(sT1), s(sT1), s(sKH)))
        k('s_lshl_b32 %s, %s, 15' % (s(sT4), s(sT3)))
        k('s_lshl_b32 %s, %s, 11' % (s(sT2), s(sT1)))
        k('s_add_u32 %s, %s, %s' % (s(sT4), s(sT4), s(sT2)))
        k('s_add_u32 %s, %s, 0x%x' % (s(sT4), s(sT4), WS_Y))
        k('s_lshl_b32 %s, %s, 12' % (s(sT2), s(sT3)))
        k('s_lshl_b32 %s, %s, 8' % (s(sT1), s(sT1)))
        k('s_add_u32 %s, %s, %s' % (s(sT2), s(sT2), s(sT1)))
        k('s_add_u32 %s, %s, 0x%x' % (s(sT2), s(sT2), WS_STATS))
        self.exchange_finish(KEEP, SND, 'By')
        X1 = 144
        for hf in range(2):
            E = range(8 * hf, 8 * hf + 8); D = range(4 * hf, 4 * hf + 4)
            for e in E: k('v_fma_f32 %s, %s, %s, %s' % (v(KEEP + e), v(KEEP + e), v(GA + e), v(XF + e)))
            for d in D: k('v_cvt_pk_bf16_f32 %s, %s, %s' % (v(X1 + d), v(KEEP + 2 * d), v(KEEP + 2 * d + 1)))
            for d in D: self.unpack(XF + 2 * d, XF + 2 * d + 1, X1 + d)
            for e in E: k('v_mul_f32 %s, %s, %s' % (v(KEEP + e), v(XF + e), v(C1 + e)))
            for d in D: k('v_cvt_pk_bf16_f32 %s, %s, %s' % (v(SND + d), v(KEEP + 2 * d), v(KEEP + 2 * d + 1)))
            self.st(v(SND + 4 * hf, 4), 4, 14, sWS, s(sT4), imm=1024 * hf, sc1=True)
        k('v_mov_b32 v10, 0x3f803f80')
        for d in range(8):
            o = 2 * (d & 1)
            k('v_dot2_f32_bf16 %s, %s, v10, %s' % (v(56 + o), v(X1 + d), '0' if d < 2 else v(56 + o)))
            k('v_dot2_f32_bf16 %s, %s, %s, %s' % (v(57 + o), v(X1 + d), v(X1 + d), '0' if d < 2 else v(57 + o)))
        k('v_lshlrev_b32 v10, 3, %s' % v(vL))
        k('v_add_f32 v56, v56, v58'); k('v_add_f32 v57, v57, v59')
        self.xlane_multi([56, 57], [58, 59], 'v_add_f32', steps=(32,))
        k('s_mov_b32 exec_hi, 0')
        self.st(v(56, 2), 2, 10, sWS, s(sT2), sc1=True)
        k('s_mov_b32 exec_hi, -1')
        fl = self.flag_store(1, 11, 12)
        for op in fl[:-1]: op()
        self.c_p3_setup()
        vm.wait_all()
        fl[-1]()
        self.stamp(8)
        self.barrier('Xa')

    def item_slot(self, n):
        return [2, 3, 4, 5, 0, 1, 6, 7][n & 7]
    YR = staticmethod(lambda sg: a_(4 * sg, 4) if sg < 24 else v(112 + 4 * (sg - 24), 4))
    def c_p3_setup(self):
        k = self.k
        k('v_lshrrev_b32 v2, 5, %s' % v(vL))
        k('v_bfe_u32 v8, %s, 4, 1' % v(vL))
        k('v_bfe_u32 v6, %s, 2, 2' % v(vL))
        k('v_bfe_u32 v7, %s, 1, 1' % v(vL))
        k('v_and_b32 v3, 2, v6')
        k('v_xor_b32 v7, v7, v3')
        k('v_lshlrev_b32 v3, 2, v8')
        k('v_xor_b32 v7, v7, v3')
        k('v_lshlrev_b32 v3, 10, v8')
        k('v_lshl_add_u32 v3, v6, 7, v3')
        k('v_lshl_add_u32 v3, v2, 9, v3')
        k('v_lshl_add_u32 v3, v7, 4, v3')
        k('v_and_b32 v6, 1, %s' % v(vL))
        k('v_lshl_add_u32 v3, v6, 3, v3')
        for ft in range(4):
            k('v_xor_b32 %s, %d, v3' % (v(152 + ft), 32 * ft))
            k('v_add_u32 %s, 0x10000, %s' % (v(156 + ft), v(152 + ft)))
        k('v_and_b32 v6, 31, %s' % v(vL))
        k('v_lshlrev_b32 v6, 4, v6')
        k('v_add_u32 v4, %d, v6' % T_EA)
        k('s_lshl_b32 %s, %s, 9' % (s(sT0), s(sW4)))
        k('s_add_u32 %s, %s, %d' % (s(sT0), s(sT0), T_EB))
        k('v_add_u32 v5, %s, v6' % s(sT0))
        k('v_mov_b32 v6, %d' % T_ZERO)
        k('v_cmp_eq_u32 vcc, 0, v2')
        k('v_cndmask_b32 v5, v6, v5, vcc')
        k('s_lshl_b32 %s, %s, 2' % (s(sT0), s(sKH)))
        k('s_add_u32 %s, %s, %s' % (s(sT0), s(sT0), s(sT2H)))
        k('s_lshl_b32 %s, 0x05050505, %s' % (s(sMSK), s(sT0)))
        k('s_mov_b32 %s, %s' % (s(sMSK + 1), s(sMSK)))
        k('s_lshl_b32 %s, %s, 2' % (s(sT2), s(sG)))
        k('s_add_u32 %s, %s, %s' % (s(sT2), s(sT2), s(sW4)))
        k('s_lshl_b32 %s, %s, 15' % (s(sT4), s(sT2)))
        k('s_add_u32 %s, %s, 0x%x' % (s(sT4), s(sT4), WS_Y))
        k('s_mul_i32 %s, %s, %d' % (s(sHB), s(sT2), HH_TB))
        k('s_lshl_b32 %s, %s, 13' % (s(sT0), s(sSLAB)))
        k('s_add_u32 %s, %s, %s' % (s(sHB), s(sHB), s(sT0)))
        k('s_add_u32 %s, %s, 0x%x' % (s(sHB), s(sHB), WS_HH))
        k('s_mul_i32 %s, %s, %d' % (s(sT3), s(sT3), HH_TB))
        k('s_lshl_b32 %s, %s, 13' % (s(sT0), s(sKH)))
        k('s_add_u32 %s, %s, %s' % (s(sT3), s(sT3), s(sT0)))
        k('s_add_u32 %s, %s, 0x%x' % (s(sT3), s(sT3), WS_HH))

    def p3_plan(self):
        o = self.opt
        K0 = o.get('k0', 12); SP = o.get('sp', 2.5); GAP = o.get('gap', 3.0)
        ops = []
        for ft in range(4):
            slope = 1.0 + (ft - 1.5) * SP / (32 - K0)
            tA = lambda ks: ks if ks <= K0 else K0 + (ks - K0) * slope
            for ks in range(33): ops.append((tA(ks) + 0.01 * ft, 0, ft, ks))
            t0 = tA(32) + GAP
            for ks in range(33): ops.append((t0 + ks + 0.01 * ft, 1, ft, ks))
        ops.sort()
        return [(U, ft, ks) for _, U, ft, ks in ops]

    def hh_load(self, half, i):
        k = self.k
        d, ft = i >> 2, i & 3
        if ft == 0:
            k('s_add_u32 %s, %s, %d' % (s(sT2), s(sT3), d * 16384 + half * 4096))
        self.ld(self.YR(i), 4, 14, sWS, s(sT2), imm=ft * 1024, sc1=True, tag=('h', half, i))

    def c_p3(self):
        k = self.k; vm = self.vm; lg = self.lg
        YR = self.YR
        ACC = 16; FB = 80; NB = 6; LA = 4; EB = 104
        self.flag_poll(1, 13, 10, 11)
        self.stamp(9)
        for sg in range(32):
            self.ld(YR(sg), 4, 14, sWS, s(sT4), imm=(sg & 3) * 1024, sc1=True, tag=('y', sg))
            if sg & 3 == 3 and sg < 31: k('s_add_u32 %s, %s, 4096' % (s(sT4), s(sT4)))
        self.barrier('X0')
        ops = self.p3_plan()
        N = len(ops)
        item = lambda o: (8 * o[0] + (o[2] >> 2)) if o[2] < 32 else None
        last_use = {}; first_use = {}
        for i, o in enumerate(ops):
            n = item(o)
            if n is not None:
                last_use[n] = i; first_use.setdefault(n, i)
        first_ext = min(i for i, o in enumerate(ops) if o[2] == 32)
        bpos = sorted(set([first_use[n] for n in range(1, 16)] + [first_ext]))
        p = bpos[-1] + 16
        while p < N - 8:
            bpos.append(p); p += 16
        ylast = {}
        for i, o in enumerate(ops):
            if o[2] < 32: ylast[o[2]] = i
        endA = max(i for i, o in enumerate(ops) if o[0] == 0)
        FLAG_A_AT = endA + self.opt.get('fa', 30)
        HA_BAR = min(b for b in bpos if b >= endA + self.opt.get('ha', 60))
        self.p3_info = []
        fill = []
        state = {'ha': False, 'hnext': 0, 'last_m': -1}
        def rd(i):
            U, ft, ks = ops[i]
            if i in bpos:
                rel = [n for n in range(16) if last_use[n] <= state['last_m']]
                need = [n for n in range(16) if first_use[n] <= i]
                name = 'X%d' % (len(self.p3_info) + 1)
                self.p3_info.append(dict(name=name, rel=rel, need=need, ext=(i >= first_ext), ha=(i == HA_BAR), pos=i))
                self.barrier(name)
                if i == first_ext:
                    self.dsr('ds_read_b128', v(EB, 4), 5, 0, tag='eb')
                if i == HA_BAR: state['ha'] = True
            b = FB + 4 * (i % NB)
            if ks == 32:
                self.dsr('ds_read_b128', v(b, 4), 4, (4 * U + ft) * 512, tag=('f', i))
                return
            n = item(ops[i])
            base = self.item_slot(n) * SLOT + (ks & 3) * 4096
            reg = (152, 156)[base >> 16] + ft; off = base & 0xffff
            self.dsr('ds_read_b64_tr_b16', v(b, 2), reg, off, tag=('f', i))
            self.dsr('ds_read_b64_tr_b16', v(b + 2, 2), reg, off + 2048, tag=('f', i))
        def epilogue(U, ft, avail):
            A = ACC + 16 * ft
            L = []
            for r in range(8): L.append(lambda r=r: k('v_max_f32 %s, 0, %s' % (v(A + r), v(A + r))))
            for r in range(8): L.append(lambda r=r: k('v_mul_f32 %s, %s, %s' % (v(A + r), v(A + r), v(A + 8 + r))))
            for d in range(4): L.append(lambda d=d: k('v_cvt_pk_bf16_f32 %s, %s, %s' % (v(A + 8 + d), v(A + 2 * d), v(A + 2 * d + 1))))
            def store():
                if U == 1 and ft == 0: k('s_add_u32 %s, %s, 4096' % (s(sHB), s(sHB)))
                self.st(v(A + 8, 4), 4, 14, sWS, s(sHB), imm=ft * 1024, sc1=True, tag=('hs', U))
            L.append(store)
            for t in L: fill.append((avail, t, (U, ft)))
        for i in range(LA): rd(i)
        for i, (U, ft, ks) in enumerate(ops):
            if U == 0 and ks < 32: vm.wait(('y', ks))
            if U == 1 and ks == 0:
                while any(f[2] == (0, ft) for f in fill): fill.pop(0)[1]()
            lg.wait(('f', i))
            if ks == 32: lg.wait('eb')
            A = ACC + 16 * ft
            k('v_mfma_f32_32x32x16_bf16 %s, %s, %s, %s' % (v(A, 16), v(FB + 4 * (i % NB), 4), YR(ks) if ks < 32 else v(EB, 4), '0' if ks == 0 else v(A, 16)))
            state['last_m'] = i
            if ks == 0 and ft == 0: self.stamp('p3u%d' % U)
            if ks == 32: epilogue(U, ft, i + 3)
            if i + LA < N: rd(i + LA)
            nf = 3
            if i == FLAG_A_AT:
                assert not any(f[2][0] == 0 for f in fill if f[2])
                fl = self.flag_store(2, 11, 12)
                for op in fl[:-1]: op()
                vm.wait(('hs', 0))
                fl[-1]()
                nf = 0
            while nf and fill and fill[0][0] <= i:
                fill.pop(0)[1](); nf -= 1
            if state['ha']:
                while nf > 1 and state['hnext'] < 28 and ylast[state['hnext']] < i:
                    self.hh_load(0, state['hnext']); state['hnext'] += 1; nf -= 1
        self.stamp('p3m')
        for f in fill: f[1]()
        while state['hnext'] < 28:
            self.hh_load(0, state['hnext']); state['hnext'] += 1
        self.c_p4_setup()
        if self.stop <= 3:
            vm.wait_all()
            for op in self.flag_store(3, 11, 12): op()
        self.stamp(10)

    def c_p3_idle(self):
        k = self.k; vm = self.vm; lg = self.lg
        k('s_lshl_b32 %s, %s, 5' % (s(sT0), s(sW4)))
        k('v_xor_b32 v7, %s, v152' % s(sT0))
        k('v_add_u32 v8, 0x10000, v7')
        k('v_and_b32 v6, 1, %s' % v(vL))
        k('v_lshlrev_b32 v6, 10, v6')
        k('v_sub_u32 v6, %d, v6' % (L_PK + 2048))
        k('v_lshl_add_u32 v6, v2, 3, v6')
        NB = 4
        def rd(ks):
            base = self.item_slot(ks >> 2) * SLOT + (ks & 3) * 4096
            reg = (7, 8)[base >> 16]; off = base & 0xffff
            b = 32 + 8 * (ks % NB)
            self.dsr('ds_read_b64_tr_b16', v(b, 2), reg, off, tag=('f', ks))
            self.dsr('ds_read_b64_tr_b16', v(b + 2, 2), reg, off + 2048, tag=('f', ks))
            k('ds_read2_b64 %s, v6 offset0:%d offset1:%d' % (v(b + 4, 4), 4 * ks, 4 * ks + 2)); lg.issue(('f', ks))
        rd(0); rd(1)
        for ks in range(32):
            lg.wait(('f', ks))
            b = 32 + 8 * (ks % NB)
            k('v_mfma_f32_32x32x16_bf16 %s, %s, %s, %s' % (v(16, 16), v(b + 4, 4), v(b, 4), '0' if ks == 0 else v(16, 16)))
            if ks + 2 < 32: rd(ks + 2)
        k('s_lshr_b32 %s, %s, 3' % (s(sT0), s(sM)))
        k('s_lshl_b32 %s, %s, 1' % (s(sT1), s(sG)))
        k('s_add_u32 %s, %s, %s' % (s(sT0), s(sT0), s(sT1)))
        k('s_cmp_ge_u32 %s, 28' % s(sT0))
        k('s_cbranch_scc1 UB_SKIP')
        k('s_lshl_b32 %s, %s, 11' % (s(sT0), s(sT0)))
        k('s_lshl_b32 %s, %s, 9' % (s(sT1), s(sW4)))
        k('s_add_u32 %s, %s, %s' % (s(sT0), s(sT0), s(sT1)))
        k('s_add_u32 %s, %s, 0x%x' % (s(sT0), s(sT0), WS_UB))
        k('v_mov_b32 v18, v17')
        k('v_mov_b32 v17, %s' % s(sTAG))
        k('v_mov_b32 v19, %s' % s(sTAG))
        k('s_mov_b32 exec_hi, 0')
        self.st(v(16, 4), 4, 14, sWS, s(sT0), sc1=True)
        k('s_mov_b32 exec_hi, -1')
        k.label('UB_SKIP')
        self.fence()
        self.flag_poll(1, 13, 10, 11, sleep=2)
        self.barrier('X0')
        for b in self.p3_info:
            self.barrier(b['name'])
            if b['ha']:
                for i in range(28): self.hh_load(0, i)
        self.c_p4_setup()
        vm.wait_all()

    def c_p4_setup(self):
        k = self.k
        k('s_lshl_b32 %s, %s, 13' % (s(sT0), s(sKH)))
        k('v_add_u32 v4, %s, v1' % s(sT0))
        k('v_xor_b32 v5, 64, v4')
        k('v_add_u32 v2, 0x10000, v4')
        k('v_add_u32 v3, 0x10000, v5')
        self.exchange_addr()
        k('s_lshl_b32 %s, %s, 1' % (s(sT0), s(sTH)))
        k('s_add_u32 %s, %s, %s' % (s(sT0), s(sT0), s(sT2H)))
        k('s_lshl_b32 %s, %s, 7' % (s(sT0), s(sT0)))
        k('s_add_u32 %s, %s, %d' % (s(sT0), s(sT0), T_R2))
        k('v_and_b32 v8, 31, %s' % v(vL))
        k('v_lshlrev_b32 v8, 2, v8')
        k('v_add_u32 v8, %s, v8' % s(sT0))

    def c_p4(self):
        k = self.k; vm = self.vm; lg = self.lg
        YR = self.YR
        self.barrier('Z0')
        self.stamp('p4a')
        FB = lambda b: (v(80 + 4 * b, 2), v(82 + 4 * b, 2), v(80 + 4 * b, 4))
        GB = 48; PK = 64; R2 = 72; XF = 96
        X1 = 144
        self.p4_info = []
        BARS = self.opt.get('p4bars', (4, 7, 11))
        def frag_addr(ks, tile):
            d, ft = ks >> 2, ks & 3
            base = self.item_slot(16 + d) * SLOT + ft * 2048
            return ((4, 2)[base >> 16] + tile, base & 0xffff)
        ops_all = []
        def seg(ks0, ks1, last):
            ops = []
            for ks in range(ks0, ks1):
                adv = 0.5 + (3.0 * (ks - ks0) / (ks1 - ks0 - 1) if last else 0)
                ops.append((ks - adv, ks, 1)); ops.append((ks, ks, 0))
            ops.sort()
            return [(ks, t) for _, ks, t in ops]
        ops = seg(0, 28, False) + seg(28, 56, True)
        NB = 6; LA = 4; KEEP, SND = 16, 32
        last_use = {}; first_use = {}
        for i, (ks, t) in enumerate(ops):
            last_use[ks >> 2] = i; first_use.setdefault(ks >> 2, i)
        state = {'last_m': -1}
        def bar(d, i):
            rel = [n for n in range(14) if last_use[n] <= state['last_m']]
            nxt = min([x for x in BARS if x > d] + [14])
            name = 'Z%d' % d
            self.p4_info.append(dict(name=name, rel=rel, need=list(range(nxt)), hb=(d == 7)))
            self.barrier(name)
        def rd(i):
            ks, t = ops[i]
            d = ks >> 2
            if d in BARS and d != 7 and i == first_use[d]: bar(d, i)
            reg, off = frag_addr(ks, t)
            b = FB(i % NB)
            self.dsr('ds_read_b64_tr_b16', b[0], reg, off, tag=('f', i))
            self.dsr('ds_read_b64_tr_b16', b[1], reg, off + 1024, tag=('f', i))
        fill = []
        def f_pk():
            self.pk_addr(10)
            for q in range(4): self.dsr('ds_read_b64', v(PK + 2 * q, 2), 10, 3072 + 16 * q, tag='pk')
            self.dsr('ds_read_b32', v(R2), 8, 0, tag='pk')
        H0 = first_use[7]
        last_snd = max(i for i, o in enumerate(ops) if o[1] == 1)
        xw = []
        seen = set(); started = set()
        nrd = 0
        def rd_upto(j):
            nonlocal nrd
            while nrd <= j and nrd < len(ops):
                rd(nrd); nrd += 1
        rd_upto(LA - 1)
        for i, (ks, t) in enumerate(ops):
            if i == H0:
                self.stamp('p4e')
                bar(7, i)
                for j in range(28): self.hh_load(1, j)
                self.stamp('p4f')
                rd_upto(i + LA - 1)
                f_pk()
                lg.wait('pk')
                for d in range(8): self.unpack(GB + 2 * d, GB + 2 * d + 1, PK + d)
                for e in range(16): k('v_mul_f32 %s, %s, %s' % (v(GB + e), v(GB + e), v(R2)))
            if ks not in seen:
                seen.add(ks); vm.wait(('h', ks // 28, ks % 28))
            lg.wait(('f', i))
            acc = SND if t else KEEP
            k('v_mfma_f32_32x32x16_bf16 %s, %s, %s, %s' % (v(acc, 16), FB(i % NB)[2], YR(ks % 28), v(acc, 16) if t in started else '0'))
            started.add(t); state['last_m'] = i
            if not (i < H0 <= i + LA): rd_upto(i + LA)
            if i == self.opt.get('fb', 8):
                fl = self.flag_store(3, 11, 12)
                for op in fl[:-1]: op()
                vm.wait(('hs', 1))
                fl[-1]()
                self.stamp('p4b')
            if i == last_snd + 2: xw = self.exchange_write(SND)
            for _ in range(2):
                if xw: xw.pop(0)()
        for op in xw: op()
        self.stamp('p4m')
        XF = 64
        for d in range(8): self.unpack(XF + 2 * d, XF + 2 * d + 1, X1 + d)
        self.exchange_finish(KEEP, SND, 'Zx')
        for hf in range(2):
            E = range(8 * hf, 8 * hf + 8); D = range(4 * hf, 4 * hf + 4)
            for e in E: k('v_fma_f32 %s, %s, %s, %s' % (v(KEEP + e), v(KEEP + e), v(GB + e), v(XF + e)))
            for d in D: k('v_cvt_pk_bf16_f32 %s, %s, %s' % (v(SND + d), v(KEEP + 2 * d), v(KEEP + 2 * d + 1)))
            for d in range(2): k('v_permlane32_swap_b32 %s, %s' % (v(SND + 4 * hf + d), v(SND + 4 * hf + 2 + d)))
            self.st(v(SND + 4 * hf, 4), 4, 9, sOUT, '0', imm=32 * hf)
        self.stamp(11)

    def bank(self, b, i):
        return v(32 + 16 * b + 4 * i, 4) if b < 8 else a_(16 * (b - 8) + 4 * i, 4)
    def src_item(self, n, i):
        if n < 16:
            U, kc = n >> 3, n & 7
            return sGU, 2, (64 * kc + 16 * i) * 3584 + U * 128
        d = n - 16
        pc = 4 * i
        kh, o = pc >> 3, pc & 7
        return sWD, 3, (128 * (2 * (d % 7) + kh) + 64 * (d // 7) + 8 * o) * 1024
    def h_dma_item(self, n):
        k = self.k
        for i in range(4):
            srd, va, so = self.src_item(n, i)
            k('s_add_u32 m0, %s, %d' % (s(sT4), self.item_slot(n) * SLOT + i * 4096))
            k('s_mov_b32 %s, %d' % (s(sT0), so))
            self.dma(va, srd, s(sT0), tag=('it', n))
        self.inlds.add(n)
    def h_stage(self, n):
        k = self.k
        b = self.free_banks.pop(0)
        self.bank_of[n] = b
        if n == 8: self.h_gu_off()
        for i in range(4):
            srd, va, so = self.src_item(n, i)
            k('s_mov_b32 %s, %d' % (s(sT0), so))
            self.ld(self.bank(b, i), 4, va, srd, s(sT0), tag=('it', n))
        self.next_stage = n + 1
    def h_gu_off(self):
        pass
    def h_write(self, n):
        b = self.bank_of.pop(n)
        self.vm.wait(('it', n))
        for i in range(4):
            base = self.item_slot(n) * SLOT + i * 4096
            self.dsw('ds_write_b128', (4, 5)[base >> 16], self.bank(b, i), base & 0xffff)
        self.inlds.add(n)
        self.pending_free.append(b)
    def h_release_banks(self):
        self.lg.wait_all()
        self.free_banks += self.pending_free; self.pending_free = []
    def h_stage_more(self, mx):
        while mx and self.free_banks and self.next_stage < 30:
            self.h_stage(self.next_stage); mx -= 1

    def split_hilo(self, src, hi, lo):
        self.rnd(hi, src)
        self.k('v_sub_f32 %s, %s, %s' % (v(lo), v(src), v(hi)))

    def helper(self):
        k = self.k; vm = self.vm; lg = self.lg
        self.free_banks = list(range(8)); self.pending_free = []; self.bank_of = {}; self.inlds = set(); self.next_stage = 4
        for c in range(4, 4 + self.NPRE): self.wq_stage(c)
        self.ln()
        k('s_lshl_b32 %s, %s, 11' % (s(sT0), s(sT2H)))
        k('s_lshl_b32 %s, %s, 10' % (s(sT1), s(sKH)))
        k('s_add_u32 %s, %s, %s' % (s(sT2), s(sT0), s(sT1)))
        k('s_add_u32 %s, %s, 0x%x' % (s(sT0), s(sT2), WS_MOD))
        k('s_add_u32 %s, %s, %d' % (s(sT2), s(sT2), L_SC))
        k('v_add_u32 v10, %s, v14' % s(sT2))
        self.poll(lambda: self.ld(v(128, 4), 4, 14, sWS, s(sT0), sc1=True), [129, 131], 11)
        self.stamp(3)
        self.unpack(132, 133, 128); self.unpack(134, 135, 130)
        self.dsw('ds_write_b128', 10, v(132, 4))
        for c in range(4 + self.NPRE, 8): self.wq_stage(c)
        k('s_lshl_b32 %s, %s, 11' % (s(sT3), s(sW4)))
        k('s_add_u32 %s, %s, 0x%x' % (s(sT3), s(sT3), WS_MOD + 4096))
        def issue2():
            for hf in range(2): self.ld(v(136 + 4 * hf, 4), 4, 14, sWS, s(sT3), imm=1024 * hf, sc1=True, tag='p2')
        issue2()
        lg.wait_all()
        self.h0()
        self.barrier('B1')
        self.stamp(4)
        h1w = []
        for p in range(5):
            ops = self.hrow(p, 1)
            for op in ops[:-1]: op()
            h1w.append(ops[-1])
        k('s_mul_i32 %s, %s, 3072' % (s(sT0), s(sW4)))
        k('s_add_u32 %s, %s, 81920' % (s(sT0), s(sT0)))
        k('v_add_u32 v6, %s, v14' % s(sT0))
        k('v_add_u32 v7, 49152, v6')
        k('v_lshrrev_b32 v10, 3, %s' % v(vL))
        k('v_and_b32 v11, 7, %s' % v(vL))
        k('v_and_b32 v5, 2, v10')
        k('v_xor_b32 v4, v11, v5')
        k('s_lshl_b32 %s, %s, 2' % (s(sT0), s(sT2H)))
        k('v_xor_b32 v4, %s, v4' % s(sT0))
        k('v_lshlrev_b32 v5, 1, v5')
        k('v_xor_b32 v5, v11, v5')
        k('s_lshl_b32 %s, %s, 3' % (s(sT0), s(sW4)))
        k('v_add_u32 v1, %s, v10' % s(sT0))
        k('v_lshlrev_b32 v1, 10, v1')
        k('v_lshl_add_u32 v1, v5, 4, v1')
        k('s_lshl_b32 %s, %s, 7' % (s(sT1), s(sCS)))
        k('v_add_u32 v1, %s, v1' % s(sT1))
        k('v_mov_b32 v3, v1')
        k('s_lshl_b32 %s, %s, 3' % (s(sT0), s(sKH)))
        k('v_add_u32 v2, %s, v10' % s(sT0))
        k('s_movk_i32 %s, 3584' % s(sT0))
        k('v_mul_u32_u24 v2, %s, v2' % s(sT0))
        k('v_lshl_add_u32 v2, v4, 4, v2')
        k('s_lshl_b32 %s, %s, 8' % (s(sT1), s(sSLAB)))
        k('s_lshr_b32 %s, %s, 3' % (s(sT0), s(sM)))
        k('s_lshl_b32 %s, %s, 1' % (s(sT2), s(sG)))
        k('s_add_u32 %s, %s, %s' % (s(sT0), s(sT0), s(sT2)))
        k('s_min_u32 %s, %s, 27' % (s(sT0), s(sT0)))
        k('s_lshl_b32 %s, %s, 7' % (s(sT0), s(sT0)))
        k('s_cmp_eq_u32 %s, 7' % s(sJ))
        k('s_cselect_b32 %s, %s, %s' % (s(sT1), s(sT0), s(sT1)))
        k('v_add_u32 v2, %s, v2' % s(sT1))
        k('s_lshl_b32 %s, %s, 10' % (s(sT4), s(sW4)))
        k('v_add_u32 v4, %s, v14' % s(sT4))
        k('v_add_u32 v5, 0x10000, v4')
        k('s_bitcmp1_b32 %s, 0' % s(sW4))
        k('s_cselect_b32 %s, %s, %s' % (s(sGU), s(sWU), s(sWG)))
        k('s_cselect_b32 %s, %s, %s' % (s(sGU + 1), s(sWU + 1), s(sWG + 1)))
        k('s_mov_b32 %s, 0x%x' % (s(sGU + 2), 512 * 3584))
        k('s_mov_b32 %s, 0x20000' % s(sGU + 3))
        self.barrier('E0')
        for op in h1w: op()
        vm.wait('p2')
        self.poll(issue2, [137, 139, 141, 143], 11, preloaded=True)
        k('v_and_b32 v10, 31, %s' % v(vL))
        k('v_lshlrev_b32 v10, 4, v10')
        k('v_lshrrev_b32 v11, 5, %s' % v(vL))
        k('v_lshl_add_u32 v10, v11, 3, v10')
        k('v_add_u32 v10, %s, v10' % s(sT4))
        k('v_mov_b32 v137, v138'); k('v_mov_b32 v141, v142')
        k('v_add_u32 v10, %d, v10' % L_PK)
        self.dsw('ds_write_b64', 10, v(136, 2), 0)
        self.dsw('ds_write_b64', 10, v(140, 2), 512)
        lg.wait_all()
        self.h_stage_more(self.opt.get('st1', 6))
        def wq_write(c):
            vm.wait(('wq', c))
            pos = WQ_POS[c] - 81920
            reg, off = (6, pos) if pos < 49152 else (7, pos - 49152)
            for oi in range(2):
                for mt in range(3):
                    self.dsw('ds_write_b128', reg, a_(24 * (c - 4) + 12 * oi + 4 * mt, 4), off + oi * 12288 + mt * 1024)
            lg.wait_all()
        def wo_dma(rounds):
            for i in rounds:
                k('s_add_u32 m0, %s, %d' % (s(sT4), (i * 4096) if i < 8 else WO1 + (i - 8) * 4096))
                k('s_mov_b32 %s, %d' % (s(sT0), i * 32 * 1024))
                self.dma(1, sWO, s(sT0), tag='wo')
        self.barrier('E1')
        k('s_cmp_lg_u32 s2, 0')
        k('s_cbranch_scc1 NOEP')
        k('s_cmp_lg_u32 %s, 7' % s(sW))
        k('s_cbranch_scc1 NOEP')
        k('s_add_u32 %s, %s, 15' % (s(sT0), s(sTAG)))
        k('v_mov_b32 v10, %s' % s(sT0))
        k('v_mov_b32 v11, 0')
        k('s_mov_b64 exec, 1')
        k('buffer_store_dword v10, v11, %s, 0 offen sc1' % s(sWS, 4))
        k('s_mov_b64 exec, -1')
        k.label('NOEP')
        wq_write(4)
        self.barrier('E2')
        wq_write(5)
        self.barrier('E3')
        wo_dma(range(0, 8))
        wq_write(6)
        self.barrier('E4')
        wq_write(7)
        self.free_banks += list(range(8, 14))
        self.barrier('E5')
        wo_dma(range(10, 16))
        self.barrier('E6')
        self.barrier('E7')
        wo_dma(range(8, 10))
        for n in range(4): self.h_dma_item(n)
        k('v_mov_b32 v10, %d' % T_ZERO)
        for e in range(4): k('v_mov_b32 %s, 0' % v(16 + e))
        self.dsw('ds_write_b128', 10, v(16, 4))
        if self.stop <= 1: return
        vm.wait('wo')
        self.barrier('B2')
        self.h_stage_more(self.opt.get('st2', 8))
        self.barrier('By')
        for n in range(4, 8): self.h_write(n)
        vm.wait(('it', 3))
        self.h_release_banks()
        self.barrier('Xa')
        if self.stop <= 2: return
        self.barrier('X0')
        k('v_lshrrev_b32 v10, 5, %s' % v(vL))
        k('v_and_b32 v11, 31, %s' % v(vL))
        k('v_lshlrev_b32 v12, 11, v10')
        k('v_lshl_add_u32 v12, v11, 3, v12')
        k('s_lshl_b32 %s, %s, 2' % (s(sT2), s(sG)))
        k('s_add_u32 %s, %s, %s' % (s(sT2), s(sT2), s(sW4)))
        k('s_lshl_b32 %s, %s, 12' % (s(sT1), s(sT2)))
        k('s_add_u32 %s, %s, 0x%x' % (s(sT1), s(sT1), WS_STATS))
        SB = 16
        for i in range(8): self.ld(v(SB + 2 * i, 2), 2, 12, sWS, s(sT1), imm=256 * i, sc1=True, tag='st')
        k('s_min_u32 %s, %s, 13' % (s(sT3), s(sSLAB)))
        k('s_lshl_b32 %s, %s, 12' % (s(sT3), s(sT3)))
        k('s_add_u32 %s, %s, %s' % (s(sT3), s(sT3), s(sT4)))
        k('s_add_u32 %s, %s, 0x%x' % (s(sT3), s(sT3), WS_UB))
        UBR = 8
        def ubissue(): self.ld(v(UBR, 4), 4, 14, sWS, s(sT3), sc1=True, tag='ub')
        def stats():
            vm.wait('st')
            for st in (4, 2, 1):
                for i in range(st):
                    k('v_add_f32 %s, %s, %s' % (v(SB + 2 * i), v(SB + 2 * i), v(SB + 2 * (i + st))))
                    k('v_add_f32 %s, %s, %s' % (v(SB + 2 * i + 1), v(SB + 2 * i + 1), v(SB + 2 * (i + st) + 1)))
            self.xlane_multi([SB, SB + 1], [SB + 2, SB + 3], 'v_add_f32', steps=(32,))
            k('v_mul_f32 %s, %s, %s' % (v(SB), f32hex(-1.0 / 512), v(SB)))
            k('v_mul_f32 %s, %s, %s' % (v(SB + 1), f32hex(1.0 / 512), v(SB + 1)))
            k('v_fma_f32 %s, -%s, %s, %s' % (v(SB + 1), v(SB), v(SB), v(SB + 1)))
            k('v_max_f32 %s, 0, %s' % (v(SB + 1), v(SB + 1)))
            k('v_add_f32 %s, %s, %s' % (v(SB + 1), f32hex(1e-5), v(SB + 1)))
            k('v_sqrt_f32 %s, %s' % (v(SB + 2), v(SB + 1)))
            k('v_rcp_f32 %s, %s' % (v(SB + 3), v(SB + 1)))
            self.split_hilo(SB, SB + 4, SB + 5)
            self.split_hilo(SB + 2, SB + 6, SB + 7)
            k('v_cvt_pk_bf16_f32 %s, %s, %s' % (v(SB + 8), v(SB + 4), v(SB + 5)))
            k('v_cvt_pk_bf16_f32 %s, %s, %s' % (v(SB + 9), v(SB + 4), v(SB + 6)))
            k('v_cvt_pk_bf16_f32 %s, %s, %s' % (v(SB + 10), v(SB + 7), v(SB + 6)))
            k('v_mov_b32 %s, 0' % v(SB + 11))
            k('s_lshl_b32 %s, %s, 9' % (s(sT0), s(sW4)))
            k('s_add_u32 %s, %s, %d' % (s(sT0), s(sT0), T_EB))
            k('v_add_u32 v12, %s, v14' % s(sT0))
            k('s_lshl_b32 %s, %s, 7' % (s(sT0), s(sW4)))
            k('s_add_u32 %s, %s, %d' % (s(sT0), s(sT0), T_R2))
            k('v_lshlrev_b32 v13, 2, %s' % v(vL))
            k('v_add_u32 %s, %s, v13' % (v(SB + 12), s(sT0)))
            k('s_mov_b32 exec_hi, 0')
            self.dsw('ds_write_b128', 12, v(SB + 8, 4))
            self.dsw('ds_write_b32', SB + 12, v(SB + 3))
            k('s_mov_b32 exec_hi, -1')
            lg.wait_all()
        def ubtab():
            vm.wait('ub')
            self.poll(ubissue, [UBR + 1, UBR + 3], 12, preloaded=True)
            self.split_hilo(UBR, SB + 4, SB + 5)
            self.split_hilo(UBR + 2, SB + 6, SB + 7)
            k('v_cvt_pk_bf16_f32 %s, %s, %s' % (v(SB + 8), v(SB + 4), v(SB + 4)))
            k('v_cvt_pk_bf16_f32 %s, %s, %s' % (v(SB + 9), v(SB + 5), v(SB + 6)))
            k('v_cvt_pk_bf16_f32 %s, %s, %s' % (v(SB + 10), v(SB + 6), v(SB + 7)))
            k('v_mov_b32 %s, 0' % v(SB + 11))
            k('v_add_u32 v12, %d, v4' % T_EA)
            self.dsw('ds_write_b128', 12, v(SB + 8, 4))
            lg.wait_all()
        ev = sum(1 << (4 * m) for m in (0, 2, 4, 6, 9, 11, 13)); od = sum(1 << (4 * m) for m in (1, 3, 5, 8, 10, 12, 14))
        k('s_cmp_eq_u32 %s, 0' % s(sKH))
        k('s_cselect_b32 %s, 0x%x, 0' % (s(sMSK), (ev ^ od) & 0xffffffff))
        k('s_cselect_b32 %s, 0x%x, 0' % (s(sMSK + 1), (ev ^ od) >> 32))
        k('s_xor_b32 %s, %s, 0x%x' % (s(sMSK), s(sMSK), od & 0xffffffff))
        k('s_xor_b32 %s, %s, 0x%x' % (s(sMSK + 1), s(sMSK + 1), od >> 32))
        k('s_lshl_b32 %s, %s, 1' % (s(sT0), s(sTH)))
        k('s_add_u32 %s, %s, %s' % (s(sT0), s(sT0), s(sT2H)))
        k('s_lshl_b64 %s, %s, %s' % (s(sMSK, 2), s(sMSK, 2), s(sT0)))
        self.h_stage_more(self.opt.get('st3', 2))
        info = self.p3_info
        iext = min(i for i, b in enumerate(info) if b['ext'])
        nextw = 8
        rel = []
        for bi, b in enumerate(info):
            if bi == max(iext - 4, 0): ubissue()
            if bi == max(iext - 3, 0): stats()
            if bi == iext: ubtab()
            nw = 0
            while nextw < 30 and (nextw - 8) in rel and nextw in self.bank_of and nw < 2:
                self.h_write(nextw); nextw += 1; nw += 1
            self.h_release_banks()
            if b['ha']: self.flag_poll(2, 13, 10, 11)
            else: self.h_stage_more(2)
            for n in b['need']: assert n in self.inlds, (b, n)
            self.barrier(b['name'])
            rel = b['rel']
        if self.stop <= 3: return
        while nextw < 30 and (nextw - 8) in rel and nextw in self.bank_of:
            self.h_write(nextw); nextw += 1
        self.h_release_banks()
        self.h_stage_more(4)
        first_need = min(self.opt.get('p4bars', (4, 7, 11)))
        for n in range(first_need): assert 16 + n in self.inlds, n
        self.barrier('Z0')
        rel = list(range(16))
        for b in self.p4_info:
            while nextw < 30 and (nextw - 8) in rel and nextw in self.bank_of:
                self.h_write(nextw); nextw += 1
            self.h_release_banks()
            self.h_stage_more(4)
            if b['hb']: self.flag_poll(3, 13, 10, 11)
            for n in b['need']: assert 16 + n in self.inlds, (b, n)
            self.barrier(b['name'])
            rel = list(range(16)) + [16 + n for n in b['rel']]
        self.barrier('Zx')

    def fin(self):
        k = self.k; vm = self.vm
        k.label('FIN')
        self.fence()
        if self.stop < 99: k('s_waitcnt vmcnt(0) lgkmcnt(0)')
        if self.stamps:
            k('s_waitcnt lgkmcnt(0)')
            for i in range(24): k('v_writelane_b32 v16, %s, %d' % (s(STAMP0 + i), i))
            k('s_memrealtime s[8:9]')
            k('s_memtime s[10:11]')
            k('s_getreg_b32 s12, hwreg(HW_REG_XCC_ID)')
            k('s_waitcnt lgkmcnt(0)')
            for i in range(5): k('v_writelane_b32 v16, %s, %d' % (s(8 + i), 24 + i))
            k('v_writelane_b32 v16, s96, 29'); k('v_writelane_b32 v16, s98, 30')
            k('s_lshl_b32 %s, s2, 3' % s(sT0))
            k('s_add_u32 %s, %s, %s' % (s(sT0), s(sT0), s(sW)))
            k('s_lshl_b32 %s, %s, 7' % (s(sT0), s(sT0)))
            k('s_add_u32 %s, %s, 0x%x' % (s(sT0), s(sT0), WS_STAMP))
            k('v_lshlrev_b32 v14, 2, %s' % v(vL))
            k('s_mov_b32 exec_hi, 0')
            self.st(v(16), 1, 14, sWS, s(sT0))
        k.label('END')

    def gen(self):
        k = self.k; vm = self.vm; lg = self.lg
        self.bars = []
        self.p0()
        q0 = (vm.save(), lg.save())
        k('s_cmp_ge_u32 %s, 4' % s(sW))
        k('s_cbranch_scc1 HELPER')
        self.bars = cb = []
        self.c_p1()
        if self.stop > 1: self.c_p2()
        if self.stop > 2:
            k('s_cmp_eq_u32 %s, 7' % s(sJ))
            k('s_cbranch_scc1 P3_IDLE')
            n0 = len(cb); q = (vm.save(), lg.save())
            self.c_p3()
            q2 = (vm.save(), lg.save())
            k('s_branch P3_DONE')
            k.label('P3_IDLE')
            self.fence()
            vm.load(q[0]); lg.load(q[1])
            self.bars = ib = []
            self.c_p3_idle()
            assert ib == cb[n0:], (ib, cb[n0:])
            self.bars = cb
            k.label('P3_DONE')
            self.fence()
            vm.load(q2[0]); lg.load(q2[1])
        if self.stop > 3: self.c_p4()
        k('s_branch FIN')
        k.label('HELPER')
        self.fence()
        vm.load(q0[0]); lg.load(q0[1])
        self.bars = hb = []
        self.helper()
        assert hb == cb, (hb, cb)
        self.fin()
        return self.k

if __name__ == '__main__':
    ap = argparse.ArgumentParser()
    ap.add_argument('-o', default='full.s')
    ap.add_argument('--stop', type=int, default=99)
    ap.add_argument('--stamps', default='')
    ap.add_argument('--map', default='B')
    ap.add_argument('--opt', default='', help='k=v,k=v')
    a = ap.parse_args()
    opt = {}
    for kv in a.opt.split(','):
        if kv:
            kk, vv = kv.split('='); opt[kk] = float(vv) if '.' in vv else int(vv)
    g = Gen(stop=a.stop, stamps=(a.stamps.split(',') if a.stamps != 'all' else [str(i) for i in range(12)]) if a.stamps else None, mapping=a.map, opt=opt)
    k = g.gen()
    hdr = open('cdna_kernels/%s.s.ref' % NAME).read().split('; Override launch')[0]
    out = build([k], header=hdr)
    out = out.replace('; @launch kernel=%s_kernel ' % NAME, '; @launch ')
    open(a.o, 'w').write(out)
    print('wrote', a.o, len(out), 'bytes', len(k.lines), 'lines')
```
